```python
import torch

def _softmax(x, axis=-1):
    return torch.softmax(x, dim=axis)

def _gelu(x):
    return torch.nn.functional.gelu(x, approximate='tanh')

def _silu(x):
    return torch.nn.functional.silu(x)

def _sigmoid(x):
    return torch.sigmoid(x)

def _layernorm(x, axis=-1, eps=1e-05):
    m = x.mean(dim=axis, keepdim=True)
    v = x.var(dim=axis, keepdim=True, unbiased=False)
    return (x - m) / torch.sqrt(v + eps)

def _scatter_add(tgt, idx, src, axis=0):
    return tgt.clone().index_add_(axis, idx, src)

def _segment_sum(src, seg, n):
    out = torch.zeros((n,) + src.shape[1:], dtype=src.dtype)
    return out.index_add_(0, seg, src)

def _pad(x, pw):
    flat = tuple((v for pair in reversed(pw) for v in pair))
    return torch.nn.functional.pad(x, flat)
kernel_name = 'standalone__swin_window_attn__vision'

def setup_inputs():

    _w = lambda a: (lambda t: t.to(torch.bfloat16) if t.is_floating_point() else t)(torch.as_tensor(a))
    H = W = 512 // 7 * 7
    C, win = (192, 7)
    return {'x': _w((lambda *s: torch.randn(*s, dtype=torch.bfloat16) * 0.2)(1, H, W, C)), 'wqkv': _w((lambda *s: torch.randn(*s, dtype=torch.bfloat16) * 0.2)(C, 3 * C)), 'wo': _w((lambda *s: torch.randn(*s, dtype=torch.bfloat16) * 0.05)(C, C))}

def reference(x, wqkv, wo):
    B, H, W, C = x.shape
    win = 7
    nh, nw = (H // win, W // win)
    xw = (lambda x, *d: x.permute(*d))(x.reshape(B, nh, win, nw, win, C), 0, 1, 3, 2, 4, 5)
    xw = xw.reshape(B * nh * nw, win * win, C)
    qkv = xw @ wqkv
    q, k, v = (qkv[..., :C].clone(), qkv[..., C:2 * C].clone(), qkv[..., 2 * C:].clone())
    scale = C ** (-0.5)
    p = _softmax(torch.einsum('bqc,bkc->bqk', q, k) * scale, axis=-1)
    o = torch.einsum('bqk,bkc->bqc', p, v) @ wo
    o = (lambda x, *d: x.permute(*d))(o.reshape(B, nh, nw, win, win, C), 0, 1, 3, 2, 4, 5)
    return o.reshape(B, H, W, C)
```

```python
import sys, struct, math
from sched import *

KN = "standalone__swin_window_attn__vision_kernel"
PN = "swin_prep_kernel"
XB = 511*511*192*2
ROW = 511*384
NWIN = 5329
WSB = 147456
def f2u(x): return struct.unpack("<I", struct.pack("<f", x))[0]
KAPPA = f2u(math.log2(math.e)/math.sqrt(192.0))

def P(op):
    if isinstance(op, tuple):
        f, i, n = op if len(op) == 3 else (op[0], op[1], 1)
        return rt(f, i, n), regs(f, i, n)
    return str(op), []
def v(i, n=1): return ("v", i, n)
def a(i, n=1): return ("a", i, n)
def s(i, n=1): return ("s", i, n)

def MF(d, A, B, C=None):
    dt, dr = P(d); at, ar = P(A); bt, br = P(B)
    if C is None: ct, cr = "0", []
    else: ct, cr = P(C)
    return I(f"v_mfma_f32_16x16x32_bf16 {dt}, {at}, {bt}, {ct}", "M", rd=ar+br, wr=dr, c=cr)
def VA(op, d, *src, k="V", extra_rd=(), extra_wr=(), dl=None):
    dt, dr = P(d); ts = []; rs = []
    for x in src:
        t, r = P(x); ts.append(t); rs += r
    if dt == "vcc": dr = ["vcc"]
    rs = list(rs) + list(extra_rd)
    if "vcc" in ts: rs.append("vcc")
    return I(f"{op} {dt}, " + ", ".join(ts), k, rd=rs, wr=list(dr)+list(extra_wr), dl=dl)
def SWAP(op, x, y):
    return I(f"{op} v{x}, v{y}", "X", rd=[f"v{x}", f"v{y}"], wr=[f"v{x}", f"v{y}"])
def SA(op, d, *src, scc_w=True, scc_r=False, dl=None):
    dt, dr = P(d); ts = []; rs = []
    for x in src:
        t, r = P(x); ts.append(t); rs += r
    if dt == "m0": dr = ["m0"]
    return I(f"{op} {dt}, " + ", ".join(ts), "S", rd=rs + (["scc"] if scc_r else []), wr=list(dr) + (["scc"] if scc_w else []), dl=dl)
def SCMP(op, x, y):
    xt, xr = P(x); yt, yr = P(y)
    return I(f"{op} {xt}, {yt}", "S", rd=xr+yr, wr=["scc"])
def DSR(d, addr, off, mem, dl=None):
    dt, dr = P(d)
    return I(f"ds_read_b128 {dt}, v{addr} offset:{off}", "DR", rd=[f"v{addr}"] + mem, wr=dr, dl=dl)
def DSW(addr, src, off, mem):
    st, sr = P(src)
    return I(f"ds_write_b128 v{addr}, {st} offset:{off}", "DW", rd=[f"v{addr}"] + sr, wr=mem)
def GL(d, addr, srd, soff, off, flags="", op=None, dl=None):
    dt, dr = P(d); st, sr = P(soff)
    op = op or f"buffer_load_dwordx{len(dr)}"
    return I(f"{op} {dt}, v{addr}, s[{srd}:{srd+3}], {st} offen offset:{off} {flags}".rstrip(), "GL",
             rd=[f"v{addr}"] + regs("s", srd, 4) + sr, wr=dr, dl=dl)
def GD(addr, srd, soff, off):
    st, sr = P(soff)
    return I(f"buffer_load_dwordx4 v{addr}, s[{srd}:{srd+3}], {st} offen offset:{off} lds", "GD",
             rd=[f"v{addr}", "m0"] + regs("s", srd, 4) + sr)
def GS(src, addr, srd, soff, off, flags="", dl=None):
    dt, dr = P(src); st, sr = P(soff)
    return I(f"buffer_store_dwordx{len(dr)} {dt}, v{addr}, s[{srd}:{srd+3}], {st} offen offset:{off} {flags}".rstrip(), "GS",
             rd=[f"v{addr}"] + regs("s", srd, 4) + sr + dr, wide=len(dr) >= 3, dl=dl)
def F(txt, vm=None, lg=None, rd=(), wr=()): return I(txt, "F", vm=vm, lg=lg, rd=rd, wr=wr)

vLANE = 0; vWB = [1, 2, 3]; vSW = [4, 5]; vSR = [6, 7]; vLA = [8, 9, 10, 11, 12, 13]; vSA = [14, 15, 16]
vLS = [17, 18]; vLSb = 19; vG2 = 20; vNINF = 21; vOOB = 22; vTMP = 23; vBIAS = 24
vS = 28; vU = 92; vTACC = 188; vTPK = 236; vSPARE = 244
aFRAG = 0; aRAW = 72; aXL = 144; aTL = 168; aRING = 192
sX = 8; sO = 12; sWS = 16; sXP = 20
sN = 26; sW = 27; sB = [28, 29, 30, 31]; sBn = 32; sBn2 = 33; sT = [34, 35, 36, 37]; sWAVE = 38; sGW = 39; sM0 = 40; sK = 41

ORIG = [[(0,0),(1,0),(2,0),(4,3)], [(0,4),(0,5),(0,6),(3,0)], [(5,3),(5,5),(3,1),(5,1)]]
def lut(t): return sum((y*8+x) << (8*g) for g, (y, x) in enumerate(ORIG[t]))
CENTER = 3*ROW + 3*384

def QORD(): return [3, 0, 1, 2]
def Sreg(q, kt): return vS + 16*q + 4*kt
def X(kt, st): return a(aFRAG + 4*(6*kt+st), 4) if kt < 3 else a(aXL + 4*st, 4)
def TPK(q, j):
    if q == 3: return a(aTL + 4*j, 4)
    if q == 0: return v(Sreg(2, j), 4) if j < 4 else v(vTPK + 4*(j-4), 4)
    return v(vU + 8*(6*(q-1)+j), 4)
def frag_lds(f):
    off = f*1024
    return vWB[off >> 16], off & 0xffff

class Gen:
    def __init__(g, ring=12, ntl="nt", nts="nt", lds_lat=36, tr_nb=500, diag=None):
        g.diag = diag
        g.tr_nb = tr_nb
        g.ring = ring; g.ntl = ntl; g.nts = nts; g.lds_lat = lds_lat
    def slot(g, f): return a(aRING + 4*(f % g.ring), 4)
    def fread(g, f, slot_f=None, dl=None):
        b, o = frag_lds(f)
        return DSR(g.slot(f if slot_f is None else slot_f), b, o, [], dl=dl)

    def winbase(g, sd, sw):
        t0, t1 = sT[0], sT[1]
        return [SA("s_mul_hi_u32", s(t0), s(sw), 58835169, scc_w=False),
                SA("s_mul_i32", s(t1), s(t0), 73, scc_w=False),
                SA("s_sub_u32", s(t1), s(sw), s(t1)),
                SA("s_mul_i32", s(t0), s(t0), 7*ROW, scc_w=False),
                SA("s_mul_i32", s(t1), s(t1), 7*384, scc_w=False),
                SA("s_add_u32", s(sd), s(t0), s(t1))]

    def transp(g, u, dl_r=None):
        m, t = divmod(u, 3)
        mem = [f"L{u & 1}"]
        off = (u & 1)*2048
        return [DSW(vSW[0], a(aRAW + 8*u, 4), off, [mem[0]+"a"]), DSW(vSW[1], a(aRAW + 8*u + 4, 4), off, [mem[0]+"b"]),
                I(f"ds_read_b128 {rt('a', aFRAG+4*(6*t+2*m), 4)}, v{vSR[0]} offset:{off}", "DR",
                  rd=[f"v{vSR[0]}", mem[0]+"a", mem[0]+"b"], wr=regs("a", aFRAG+4*(6*t+2*m), 4), dl=dl_r),
                I(f"ds_read_b128 {rt('a', aFRAG+4*(6*t+2*m+1), 4)}, v{vSR[1]} offset:{off}", "DR",
                  rd=[f"v{vSR[1]}", mem[0]+"a", mem[0]+"b"], wr=regs("a", aFRAG+4*(6*t+2*m+1), 4), dl=dl_r)]
    def xloads(g, u, sb, dl=None):
        m, t = divmod(u, 3)
        return [GL(a(aRAW + 8*u + 4*b, 4), vLA[2*t+b], sXP, s(sb), 128*m, g.ntl, dl=dl) for b in range(2)]

    def softmax(g, q):
        o = []
        R = lambda k: v(vS + 16*q + k)
        m, t = vS + 16*q + 14, vS + 16*q + 15
        o.append(VA("v_max3_f32", v(m), R(0), R(1), R(2)))
        for k in range(3, 13, 2): o.append(VA("v_max3_f32", v(m), v(m), R(k), R(k+1)))
        o.append(VA("v_max_f32", v(m), v(m), R(13)))
        for sw in ("v_permlane32_swap_b32", "v_permlane16_swap_b32"):
            o.append(VA("v_mov_b32", v(t), v(m))); o.append(SWAP(sw, m, t)); o.append(VA("v_max_f32", v(m), v(m), v(t)))
        for k in range(14): o.append(VA("v_sub_f32", R(k), R(k), v(m)))
        for k in range(14): o.append(VA("v_exp_f32", R(k), R(k), k="T"))
        o.append(VA("v_add_f32", v(m), R(0), R(1)))
        for k in range(2, 14): o.append(VA("v_add_f32", v(m), v(m), R(k)))
        for sw in ("v_permlane32_swap_b32", "v_permlane16_swap_b32"):
            o.append(VA("v_mov_b32", v(t), v(m))); o.append(SWAP(sw, m, t)); o.append(VA("v_add_f32", v(m), v(m), v(t)))
        o.append(VA("v_rcp_f32", v(m), v(m), k="T"))
        for k in range(14): o.append(VA("v_mul_f32", R(k), R(k), v(m)))
        for k in range(4): o.append(VA("v_cvt_pk_bf16_f32", R(k), R(2*k), R(2*k+1)))
        for k in range(3): o.append(VA("v_cvt_pk_bf16_f32", R(8+k), R(8+2*k), R(9+2*k)))
        o.append(VA("v_mov_b32", R(11), 0))
        return o

    def masks(g):
        o = [SA("s_sub_u32", s(sT[2]), s(sN), 1)]
        for r in range(2):
            o.append(VA("v_cmp_eq_u32", "vcc", s(sN if r == 0 else sT[2]), v(vG2)))
            o.append(VA("v_cndmask_b32", v(vBIAS+r), v(vNINF), v(vBIAS+2), "vcc"))
            o.append(VA("v_cndmask_b32", v(vLS[r]), v(vOOB), v(vLSb), "vcc"))
        return o

    def s_phase(g, q):
        o = []
        for st in range(6):
            for kt in range(4):
                d = v(Sreg(q, kt), 4)
                c = d if st else (v(vBIAS, 4) if kt == 3 else None)
                o.append(MF(d, X(kt, st), TPK(q, st), c))
        return o

    def body(g):
        o = []
        R = g.ring
        o += [SA("s_add_u32", s(sB[r]), s(sB[0]), r*ROW) for r in range(1, 4)]
        o.append(SA("s_add_u32", s(sT[3]), s(sW), 2048))
        o += g.winbase(sBn2, sT[3])
        o.append(SCMP("s_cmp_lt_u32", s(sT[3]), NWIN))
        o.append(SA("s_cselect_b32", s(sXP+2), XB, 0, scc_w=False, scc_r=True))
        o += g.s_phase(3)
        o += g.softmax(3)
        nf = R
        def use(f):
            return g.slot(f)
        for j in range(6):
            for st in range(6):
                for b in range(2):
                    f = (j*6+st)*2 + b
                    for t in range(3):
                        d = v(vTACC + 24*(j & 1) + 12*b + 4*t, 4)
                        o.append(MF(d, use(f), X(t, st), d if st else None))
                    o.append(g.fread(f + R))
            for t in range(3):
                dst = TPK(t, j)[1]
                for b in range(2):
                    acc = vTACC + 24*(j & 1) + 12*b + 4*t
                    o.append(VA("v_cvt_pk_bf16_f32", v(dst+2*b), v(acc), v(acc+1)))
                    o.append(VA("v_cvt_pk_bf16_f32", v(dst+2*b+1), v(acc+2), v(acc+3)))
        for q in range(3):
            o += g.s_phase(q)
            o += g.softmax(q)
        for ai in range(12):
            for st in range(6):
                f = 72 + ai*6 + st
                for t in range(3):
                    d = v(vTACC + 12*(ai & 1) + 4*t, 4)
                    o.append(MF(d, X(t, st), use(f), d if st else None))
                if f + R < 144: o.append(g.fread(f + R))
                else: o.append(g.fread(f + R - 144, slot_f=f + R, dl=-40 + (f + R - 144)))
            for t in range(3):
                acc = vTACC + 12*(ai & 1) + 4*t
                o.append(VA("v_cvt_pk_bf16_f32", v(vU + 8*ai + 2*t), v(acc), v(acc+1)))
                o.append(VA("v_cvt_pk_bf16_f32", v(vU + 8*ai + 2*t + 1), v(acc+2), v(acc+3)))
        assert 144 % R == 0 or True
        for u in range(9):
            tr = g.transp(u, dl_r=-60 + 4*u)
            tr[0].nb = tr[1].nb = g.tr_nb
            o += tr
            o += g.xloads(u, sBn2, dl=-56 + 4*u)
        pool = [vSPARE, vSPARE+4, vSPARE+8, vTPK, vTPK+4, Sreg(3, 1), Sreg(3, 3), Sreg(0, 1), Sreg(0, 3)]
        pi = 0; hh = 0
        for q in QORD():
            for h in range(2):
                ob = vTACC + 24*((hh+1) & 1); hh += 1
                for ks in range(2):
                    for k in range(6):
                        d = v(ob + 4*k, 4)
                        o.append(MF(d, v(Sreg(q, 2*ks), 4), v(vU + 8*(6*h+k) + 4*ks, 4), d if ks else None))
                for r in range(2 if q == 3 else 4):
                    op = pool[pi % len(pool)]; pi += 1
                    for k in range(3):
                        o.append(VA("v_cvt_pk_bf16_f32", v(op+k), v(ob + 8*k + r), v(ob + 8*k + 4 + r)))
                    if q == 3: ad, sb, im = vLS[r], sB[0], 0
                    elif q == 0: ad, sb, im = vSA[0], sB[0], 384*r
                    elif q == 1: ad, sb, im = vSA[1], sB[r], 0
                    else: ad, sb, im = vSA[2], sB[r >> 1], 384*(r & 1)
                    o.append(GS(v(op, 3), ad, sO, s(sb), im + 192*h, g.nts))
        o.append(SA("s_mov_b32", s(sB[0]), s(sBn), scc_w=False))
        o.append(SA("s_mov_b32", s(sBn), s(sBn2), scc_w=False))
        o.append(SA("s_add_u32", s(sN), s(sN), 1))
        o.append(SA("s_add_u32", s(sW), s(sW), 1024))
        o += g.masks()
        return o

    def ring_fix(g):
        return 144 % g.ring

    def prologue(g):
        B = {}
        o = []
        A = o.append
        A(F("s_cmp_ge_u32 s2, 256")); A(F("s_cbranch_scc1 L_end"))
        A(F("s_load_dwordx2 s[4:5], s[0:1], 0")); A(F("s_load_dwordx2 s[6:7], s[0:1], 24")); A(F("s_load_dwordx2 s[24:25], s[0:1], 40"))
        T = [vS+k for k in range(16)]
        A(VA("v_lshrrev_b32", v(T[0]), 6, v(0)))
        A(VA("v_and_b32", v(0), 63, v(0)))
        A(VA("v_readfirstlane_b32", s(sWAVE), v(T[0])))
        vi, vg = T[1], T[2]
        A(VA("v_and_b32", v(vi), 15, v(0))); A(VA("v_lshrrev_b32", v(vg), 4, v(0)))
        A(SA("s_lshl_b32", s(sGW), s(2), 2)); A(SA("s_add_u32", s(sGW), s(sGW), s(sWAVE)))
        A(VA("v_lshrrev_b32", v(T[4]), 2, v(vi))); A(VA("v_lshlrev_b32", v(T[4]), 1, v(T[4])))
        A(VA("v_and_b32", v(T[5]), 1, v(vi))); A(VA("v_add_u32", v(T[4]), v(T[4]), v(T[5])))
        A(VA("v_lshlrev_b32", v(T[4]), 10, v(T[4]))); A(VA("v_add_u32", v(T[4]), s(sGW), v(T[4])))
        A(SA("s_mov_b32", s(sT[0]), 58835169, scc_w=False))
        A(VA("v_mul_hi_u32", v(T[5]), v(T[4]), s(sT[0])))
        A(VA("v_mul_u32_u24", v(T[6]), 73, v(T[5]))); A(VA("v_sub_u32", v(T[6]), v(T[4]), v(T[6])))
        A(VA("v_mul_u32_u24", v(T[5]), 7*ROW, v(T[5]))); A(VA("v_mul_u32_u24", v(T[6]), 7*384, v(T[6])))
        A(VA("v_add_u32", v(T[3]), v(T[5]), v(T[6])))
        A(VA("v_lshlrev_b32", v(T[5]), 4, v(vg))); A(VA("v_add_u32", v(T[3]), v(T[3]), v(T[5])))
        A(VA("v_add_u32", v(T[3]), CENTER, v(T[3])))
        A(VA("v_mov_b32", v(vOOB), "0x80000000")); A(VA("v_mov_b32", v(vNINF), "0xff800000"))
        A(VA("v_and_b32", v(T[5]), 2, v(vi))); A(VA("v_lshlrev_b32", v(T[5]), 14, v(T[5])))
        A(VA("v_add_u32", v(T[4]), v(T[4]), v(T[5])))
        A(VA("v_cmp_gt_u32", "vcc", NWIN, v(T[4])))
        A(VA("v_cndmask_b32", v(T[3]), v(vOOB), v(T[3]), "vcc"))
        A(VA("v_lshlrev_b32", v(vWB[0]), 4, v(0)))
        A(F("s_waitcnt lgkmcnt(0)", wr=["s4", "s5", "s6", "s7", "s24", "s25"]))
        for srd, lo, sz in ((sX, 4, XB), (sXP, 4, XB), (sO, 6, XB), (sWS, 24, WSB)):
            A(SA("s_mov_b32", s(srd), s(lo), scc_w=False)); A(SA("s_mov_b32", s(srd+1), s(lo+1), scc_w=False))
            A(SA("s_mov_b32", s(srd+2), sz, scc_w=False)); A(SA("s_mov_b32", s(srd+3), "0x20000", scc_w=False))
        for st in range(6): A(GL(a(aXL + 4*st, 4), T[3], sX, 0, 64*st))
        A(SA("s_mul_i32", s(sM0), s(sWAVE), 18432, scc_w=False))
        def dma(base):
            for k in range(18):
                if k % 4 == 0:
                    A(SA("s_add_u32", s(sK), s(sM0), base + 1024*k))
                    A(SA("s_mov_b32", "m0", s(sK), scc_w=False))
                A(GD(vWB[0], sWS, s(sK), 1024*(k % 4)))
        dma(0)
        A(VA("v_lshrrev_b32", v(T[4]), 5, v(0)))
        A(VA("v_bfe_u32", v(T[5]), v(0), 3, 2))
        A(VA("v_and_b32", v(T[6]), 7, v(0))); A(VA("v_lshlrev_b32", v(T[6]), 4, v(T[6])))
        A(SA("s_mov_b32", s(sT[1]), ROW, scc_w=False)); A(SA("s_movk_i32", s(sT[2]), 384, scc_w=False))
        def origin(dst, t, vsh):
            A(SA("s_mov_b32", s(sT[0]), lut(t), scc_w=False))
            A(VA("v_lshrrev_b32", v(T[8]), v(vsh), s(sT[0])))
            A(VA("v_bfe_u32", v(T[9]), v(T[8]), 3, 3)); A(VA("v_and_b32", v(T[8]), 7, v(T[8])))
            A(VA("v_mul_u32_u24", v(T[9]), ROW, v(T[9])))
            A(VA("v_mad_u32_u24", v(dst), v(T[8]), s(sT[2]), v(T[9])))
        A(VA("v_mad_u32_u24", v(T[10]), v(T[5]), s(sT[2]), v(T[6])))
        A(VA("v_mad_u32_u24", v(T[11]), v(T[5]), s(sT[1]), v(T[6])))
        A(VA("v_lshrrev_b32", v(T[12]), 1, v(T[5]))); A(VA("v_mad_u32_u24", v(T[12]), v(T[12]), s(sT[1]), v(T[6])))
        A(VA("v_and_b32", v(T[13]), 1, v(T[5]))); A(VA("v_mad_u32_u24", v(T[12]), v(T[13]), s(sT[2]), v(T[12])))
        for b in range(2):
            A(VA("v_lshlrev_b32", v(T[7]), 3, v(T[4])))
            if b: A(VA("v_add_u32", v(T[7]), 16, v(T[7])))
            for t in range(3):
                origin(vLA[2*t+b], t, T[7])
                A(VA("v_add_u32", v(vLA[2*t+b]), v(vLA[2*t+b]), v(T[10+t])))
        A(SA("s_mov_b32", s(sW), s(sGW), scc_w=False)); A(SA("s_mov_b32", s(sN), 0, scc_w=False))
        o += g.winbase(sB[0], sW)
        for u in range(9): o += g.xloads(u, sB[0])
        dma(73728)
        A(SA("s_movk_i32", s(sT[2]), 384, scc_w=False))
        A(VA("v_lshlrev_b32", v(T[7]), 3, v(vg)))
        A(VA("v_mul_u32_u24", v(T[14]), 12, v(vi)))
        for t in range(3):
            origin(vSA[t], t, T[7])
            A(VA("v_add_u32", v(vSA[t]), v(vSA[t]), v(T[14])))
        A(VA("v_add_u32", v(vLSb), CENTER, v(T[14])))
        A(VA("v_lshlrev_b32", v(vG2), 1, v(vg)))
        A(VA("v_add_u32", v(vWB[1]), "0x10000", v(vWB[0]))); A(VA("v_add_u32", v(vWB[2]), "0x20000", v(vWB[0])))
        A(VA("v_mov_b32", v(vBIAS+2), 0)); A(VA("v_mov_b32", v(vBIAS+3), 0))
        A(SA("s_lshl_b32", s(sT[0]), s(sWAVE), 12)); A(SA("s_add_u32", s(sT[0]), s(sT[0]), WSB))
        A(VA("v_and_b32", v(T[8]), 7, v(0))); A(VA("v_xor_b32", v(T[8]), v(T[8]), v(vg))); A(VA("v_lshlrev_b32", v(T[8]), 4, v(T[8])))
        A(VA("v_lshrrev_b32", v(T[9]), 3, v(0))); A(VA("v_lshlrev_b32", v(T[9]), 7, v(T[9])))
        A(VA("v_add3_u32", v(vSW[0]), v(T[8]), v(T[9]), s(sT[0])))
        A(VA("v_xor_b32", v(vSW[1]), 64, v(vSW[0]))); A(VA("v_add_u32", v(vSW[1]), "0x400", v(vSW[1])))
        A(VA("v_lshrrev_b32", v(T[8]), 1, v(vi))); A(VA("v_xor_b32", v(T[8]), v(T[8]), v(vg))); A(VA("v_lshlrev_b32", v(T[8]), 4, v(T[8])))
        A(VA("v_lshlrev_b32", v(T[9]), 7, v(vi)))
        A(VA("v_add3_u32", v(vSR[0]), v(T[8]), v(T[9]), s(sT[0])))
        A(VA("v_xor_b32", v(vSR[1]), 64, v(vSR[0])))
        A(SA("s_add_u32", s(sT[3]), s(sW), 1024))
        o += g.winbase(sBn, sT[3])
        o += g.masks()
        A(F("s_waitcnt vmcnt(36)", vm=36)); A(F("s_barrier"))
        B["p0"] = o
        o = []; R = g.ring
        for f in range(R): o.append(g.fread(f))
        for j in range(6):
            for st in range(6):
                for b in range(2):
                    f = (j*6+st)*2 + b
                    d = v(vTACC + 8*(j & 1) + 4*b, 4)
                    o.append(MF(d, g.slot(f), a(aXL + 4*st, 4), d if st else None))
                    if f + R < 72: o.append(g.fread(f + R))
            for b in range(2):
                acc = vTACC + 8*(j & 1) + 4*b
                for hh in range(2):
                    tmp = vTPK + 4*(j & 1) + 2*b + hh
                    o.append(VA("v_cvt_pk_bf16_f32", v(tmp), v(acc+2*hh), v(acc+2*hh+1)))
                    o.append(VA("v_accvgpr_write_b32", a(aTL + 4*j + 2*b + hh), v(tmp)))
        for u in range(9):
            o += g.transp(u)
            o += g.xloads(u, sBn)
        B["p1"], _ = schedule(o, g.lds_lat, verbose=True, name="p1")
        B["p1"] += [F("s_waitcnt vmcnt(18)", vm=18), F("s_barrier")]
        o = []
        for f in range(72, 72+R): o.append(g.fread(f))
        for ai in range(12):
            d = v(vTACC + 4*(ai % 3), 4)
            for st in range(6):
                f = 72 + ai*6 + st
                o.append(MF(d, a(aXL + 4*st, 4), g.slot(f), d if st else None))
                if f + R < 144: o.append(g.fread(f + R))
                else: o.append(g.fread(f + R - 144, slot_f=f + R))
            acc = vTACC + 4*(ai % 3)
            o.append(VA("v_cvt_pk_bf16_f32", v(vU + 8*ai + 6), v(acc), v(acc+1)))
            o.append(VA("v_cvt_pk_bf16_f32", v(vU + 8*ai + 7), v(acc+2), v(acc+3)))
        B["p2"], _ = schedule(o, g.lds_lat, verbose=True, name="p2")
        return B

    def main_kernel(g):
        assert 144 % g.ring == 0, "ring must divide 144"
        B = g.prologue()
        body, _ = schedule(g.body(), g.lds_lat, verbose=True, name="body")
        body = [F(".p2align 6"), F("L_loop:")] + body + [F(f"s_cmp_lt_u32 s{sW}, {NWIN}", rd=[f"s{sW}"]), F("s_cbranch_scc1 L_loop")]
        B["body"] = body
        path = ["p0", "p1", "p2", "body", "body", "body"]
        B = insert_waits(B, path)
        B, nn = fix_hazards(B, path)
        o = [f".globl {KN}", ".p2align 8", f".type {KN},@function", f"{KN}:"]
        if g.diag:
            T = {b: [c.txt for c in B[b]] for b in B}
            T["p0"].insert(2, "s_memtime s[44:45]"); T["p0"].insert(3, "s_memrealtime s[76:77]")
            T["p0"].append("s_memtime s[46:47]")
            T["p1"].append("s_memtime s[48:49]")
            nb = []; m = 0; k = 3
            for t in T["body"]:
                if t.startswith("v_mfma"):
                    if m in g.diag: nb.append(f"s_memtime s[{44+2*k}:{45+2*k}]"); k += 1
                    m += 1
                if t.startswith("s_cmp_lt_u32 s%d, %d" % (sW, NWIN)):
                    nb.append(f"s_memtime s[{44+2*k}:{45+2*k}]"); k += 1
                    nb.append("s_memrealtime s[78:79]")
                    nb.append("s_waitcnt lgkmcnt(0)")
                    for i in range(k): nb.append(f"v_writelane_b32 v{vTMP}, s{44+2*i}, {i}")
                    nb.append(f"v_writelane_b32 v{vTMP}, s76, 14"); nb.append(f"v_writelane_b32 v{vTMP}, s78, 15")
                    nb += ["s_mov_b32 s80, s24", "s_mov_b32 s81, s25", "s_mov_b32 s82, 0x10000000", "s_mov_b32 s83, 0x20000",
                           f"s_mul_i32 s84, s{sGW}, 6", f"s_add_u32 s84, s84, s{sN}", "s_sub_u32 s84, s84, 1", "s_lshl_b32 s84, s84, 8", "s_add_u32 s84, s84, 0x40000",
                           "s_mov_b64 exec, 0xffff", f"buffer_store_dword v{vTMP}, v{vWB[0]}, s[80:83], s84 offen", "s_mov_b64 exec, -1"]
                nb.append(t)
            assert k <= 14
            T["body"] = nb
            for b in ("p0", "p1", "p2", "body"): o += T[b]
        else:
            for b in ("p0", "p1", "p2", "body"): o += [c.txt for c in B[b]]
        o += ["L_end:", "s_endpgm"]
        return o

def prep_kernel():
    o = []; A = o.append
    A(F("s_cmp_ge_u32 s2, 144")); A(F("s_cbranch_scc1 LP_end"))
    A(F("s_load_dwordx4 s[4:7], s[0:1], 8")); A(F("s_load_dwordx2 s[24:25], s[0:1], 40"))
    A(VA("v_and_b32", v(1), 15, v(0))); A(VA("v_lshrrev_b32", v(2), 4, v(0)))
    A(VA("v_lshrrev_b32", v(3), 2, v(1))); A(VA("v_lshlrev_b32", v(3), 3, v(3)))
    A(VA("v_and_b32", v(4), 3, v(1))); A(VA("v_add_u32", v(3), v(3), v(4)))
    A(VA("v_mul_u32_u24", v(3), 1152, v(3)))
    A(VA("v_lshlrev_b32", v(4), 4, v(2))); A(VA("v_add_u32", v(3), v(3), v(4)))
    A(VA("v_lshlrev_b32", v(5), 4, v(0)))
    A(F("s_waitcnt lgkmcnt(0)", wr=regs("s", 4, 4) + ["s24", "s25"]))
    for srd, lo, sz in ((8, 4, 192*576*2), (12, 6, 192*192*2), (16, 24, WSB)):
        A(SA("s_mov_b32", s(srd), s(lo), scc_w=False)); A(SA("s_mov_b32", s(srd+1), s(lo+1), scc_w=False))
        A(SA("s_mov_b32", s(srd+2), sz, scc_w=False)); A(SA("s_mov_b32", s(srd+3), "0x20000", scc_w=False))
    A(SA("s_lshl_b32", s(26), s(2), 10))
    A(F("s_cmp_ge_u32 s2, 72")); A(F("s_cbranch_scc1 LP_w"))
    p0 = o
    def core(o, scale):
        A = o.append
        for k in range(6):
            for e in range(2):
                d = v(100 + 4*e, 4)
                A(MF(d, v(16 + 24*e + 4*k, 4), v(64 + 4*k, 4), d if k else None))
        if scale:
            for r in range(8): A(VA("v_mul_f32", v(100+r), hex(KAPPA), v(100+r)))
        for r in range(4): A(VA("v_cvt_pk_bf16_f32", v(108+r), v(100+2*r), v(101+2*r)))
        A(GS(v(108, 4), 5, 16, s(26), 0))
        A(F("s_endpgm"))
    def aloads(o, colb):
        for e in range(2):
            o.append(SA("s_add_u32", s(31), s(30), e*4*1152 + colb))
            for k in range(6): o.append(GL(v(16 + 24*e + 4*k, 4), 3, 8, s(31), 64*k))
    o = []; A = o.append
    A(SA("s_mul_i32", s(27), s(2), 43, scc_w=False)); A(SA("s_lshr_b32", s(27), s(27), 9))
    A(SA("s_mul_i32", s(28), s(27), 12, scc_w=False)); A(SA("s_sub_u32", s(28), s(2), s(28)))
    A(SA("s_lshr_b32", s(29), s(28), 1)); A(SA("s_and_b32", s(28), s(28), 1))
    A(SA("s_mul_i32", s(30), s(29), 32*1152, scc_w=False))
    aloads(o, 0)
    A(SA("s_mul_i32", s(32), s(27), 32*1152, scc_w=False)); A(SA("s_mul_i32", s(33), s(28), 4*1152, scc_w=False))
    A(SA("s_add_u32", s(32), s(32), s(33))); A(SA("s_add_u32", s(32), s(32), 384))
    for k in range(6): A(GL(v(64 + 4*k, 4), 3, 8, s(32), 64*k))
    core(o, True)
    pm = o
    o = [F("LP_w:")]; A = o.append
    A(SA("s_sub_u32", s(27), s(2), 72))
    A(SA("s_mul_i32", s(28), s(27), 43, scc_w=False)); A(SA("s_lshr_b32", s(28), s(28), 8))
    A(SA("s_mul_i32", s(29), s(28), 6, scc_w=False)); A(SA("s_sub_u32", s(29), s(27), s(29)))
    A(SA("s_mul_i32", s(30), s(29), 32*1152, scc_w=False))
    aloads(o, 768)
    A(SCMP("s_cmp_ge_u32", s(28), 6)); A(SA("s_cselect_b32", s(32), 90, 0, scc_w=False, scc_r=True))
    A(SA("s_add_u32", s(32), s(32), s(28))); A(SA("s_lshl_b32", s(32), s(32), 1))
    A(VA("v_mul_u32_u24", v(6), 12, v(1))); A(VA("v_mul_u32_u24", v(7), 8*384, v(2))); A(VA("v_add_u32", v(6), v(6), v(7)))
    for k in range(6):
        A(SA("s_add_u32", s(33), s(32), 12288*k))
        for jj in range(8):
            A(GL(v((112 + 4*k + jj//2) if jj & 1 else (64 + 4*k + jj//2)), 6, 12, s(33), 384*jj, op="buffer_load_ushort"))
    for k in range(24): A(VA("v_lshl_or_b32", v(64+k), v(112+k), 16, v(64+k)))
    core(o, False)
    pw = o
    B = dict(p0=p0, pm=pm, pw=pw)
    B1 = insert_waits(dict(p0=p0, pm=pm), ["p0", "pm"]); B1, _ = fix_hazards(B1, ["p0", "pm"])
    B2 = insert_waits(dict(p0=p0, pw=pw), ["p0", "pw"]); B2, _ = fix_hazards(B2, ["p0", "pw"])
    assert [c.txt for c in B1["p0"]] == [c.txt for c in B2["p0"]]
    o = [f".globl {PN}", ".p2align 8", f".type {PN},@function", f"{PN}:"]
    o += [c.txt for c in B1["p0"]] + [c.txt for c in B1["pm"]] + [c.txt for c in B2["pw"]]
    o += ["LP_end:", "s_endpgm"]
    return o

def kd(name, nv, acc, ns):
    return [".p2align 6", f".amdhsa_kernel {name}", f"  .amdhsa_next_free_vgpr {nv}", f"  .amdhsa_next_free_sgpr {ns}",
            f"  .amdhsa_accum_offset {acc}", "  .amdhsa_group_segment_fixed_size 0", "  .amdhsa_kernarg_size 48",
            "  .amdhsa_user_sgpr_count 2", "  .amdhsa_user_sgpr_kernarg_segment_ptr 1",
            "  .amdhsa_system_sgpr_workgroup_id_x 1", ".end_amdhsa_kernel"]

def build(path, **kw):
    g = Gen(**kw)
    hdr = open("standalone__swin_window_attn__vision.s.ref").read().split("\n")
    hdr = [l for l in hdr[:7]]
    o = hdr + [f"; @launch kernel={PN} grid=(144,1,1) block=(64,1,1) lds=0",
               f"; @launch kernel={KN} grid=(256,1,1) block=(256,1,1) lds=163840",
               '.amdgcn_target "amdgcn-amd-amdhsa--gfx950"', ".text"]
    o += g.main_kernel() + prep_kernel()
    o += ['.section .rodata,"a"'] + kd(KN, 512, 256, 96) + kd(PN, 136, 136, 40)
    open(path, "w").write("\n".join(o) + "\n")

if __name__ == "__main__":
    kw = eval("dict(" + (sys.argv[2] if len(sys.argv) > 2 else "") + ")")
    build(sys.argv[1] if len(sys.argv) > 1 else "k1.s", **kw)
```

```python
import sys
from gen import *

sRB = 42; sRB2 = 43; sWn = 33
vX0 = vS
SD = 48

def GDm(tok):
    return I(f"buffer_load_dwordx4 v{vWB[0]}, s[{sWS}:{sWS+3}], m0 offen lds", "GD",
             rd=[f"v{vWB[0]}", "m0"] + regs("s", sWS, 4), wr=[tok])

class Gen2(Gen):
    def __init__(g, ring=12, ntl="nt", nts="", lds_lat=36, tr_nb=500, diag=None, ld0=0, ldstep=14, st0=8, ststep=7,
                 c1=6, wstep=8, tail=False, mlast=14, pro='I', lord='m', trip=1):
        g.pro = pro; g.trip = trip
        g.lo = list(range(18)) if lord == 'm' else [2*(3*m + (h >> 1)) + (h & 1) for h in range(6) for m in range(3)]
        Gen.__init__(g, ring, ntl, nts, lds_lat, tr_nb, diag)
        g.ld0 = ld0; g.ldstep = ldstep; g.st0 = st0; g.ststep = ststep; g.c1 = c1; g.wstep = wstep; g.tail = tail; g.mlast = mlast
        g.seq = list(range(72)) + [72 + ai*6 + st for ai in range(8) for st in range(6)] + \
                [72 + (8+k)*6 + st for st in range(6) for k in range(4)]
    def rd(g, k, first, dl=None):
        f = g.seq[k % 144]
        b, o = frag_lds(f)
        i = DSR(g.slot(k), b, o, ["Wrdy"] if (first and 72 <= k < 144) else [], dl=dl)
        return i
    def dma_piece(g, half, k):
        o = []
        src, kk = (sRB, k) if k < 16 else (sRB2, k - 16)
        if half == 0: o.append(SA("s_xor_b32", "m0", s(src), kk << 12))
        else:
            o.append(SA("s_xor_b32", s(sK), s(src), kk << 12)); o.append(SA("s_add_u32", "m0", s(sK), 73728))
        o.append(GDm(f"Wd{half}_{k}"))
        return o
    def transp_from(g, u, src, dl_r=None):
        m, t = divmod(u, 3)
        L = f"L{u & 1}"; off = (u & 1)*2048
        f, b = src
        o = [DSW(vSW[0], (f, b + 8*u, 4), off, [L+"a"]), DSW(vSW[1], (f, b + 8*u + 4, 4), off, [L+"b"])]
        for h in range(2):
            d = aFRAG + 4*(6*t+2*m+h)
            o.append(I(f"ds_read_b128 {rt('a', d, 4)}, v{vSR[h]} offset:{off}", "DR", rd=[f"v{vSR[h]}", L+"a", L+"b"], wr=regs("a", d, 4), dl=dl_r))
        return o
    def xload(g, k, sb, dst=("a", aRAW), srd=sXP):
        k = g.lo[k]
        u, b = divmod(k, 2); m, t = divmod(u, 3)
        return GL((dst[0], dst[1] + 4*k, 4), vLA[2*t+b], srd, s(sb), 128*m, g.ntl)

    def next_window(g):
        o = [SA("s_mov_b32", s(sB[0]), s(sBn), scc_w=False), SA("s_add_u32", s(sN), s(sN), 1), SA("s_mov_b32", s(sW), s(sWn), scc_w=False),
             SA("s_add_u32", s(sWn), s(sWn), 1024)]
        if g.tail:
            o += [SA("s_add_u32", s(sT[3]), s(2), 5120), SCMP("s_cmp_eq_u32", s(sN), 4), SA("s_cselect_b32", s(sWn), s(sT[3]), s(sWn), scc_w=False, scc_r=True)]
        o += g.winbase(sBn, sWn)
        o.append(SCMP("s_cmp_lt_u32", s(sWn), NWIN))
        o.append(SA("s_cselect_b32", s(sXP+2), XB, 0, scc_w=False, scc_r=True))
        o += g.masks()
        return o

    def body(g, first):
        o = []; R = g.ring
        nm = [0]
        def M(*x): nm[0] += 1; o.append(MF(*x))
        NT = 4 if first else 3
        tot = 624 + (144 if first else 0)
        o += [SA("s_add_u32", s(sB[r]), s(sB[0]), r*ROW) for r in range(1, 4)]
        if first:
            for k in range(18):
                p = g.dma_piece(1, k)
                for i in p: i.nb = g.wstep*k
                o += p
            for j, k in enumerate(range(g.c1, 18)):
                i = g.xload(k, sBn); i.nb = g.wstep//2 + g.wstep*(j - j % g.trip); o.append(i)
            bar = I("s_barrier", "B", rd=[f"Wd1_{k}" for k in range(18)], wr=["Wrdy"]); bar.nb = 4*(72-R) - 10
            o.append(bar)
        else:
            for k in range(18):
                i = g.xload(k, sBn); i.nb = g.ld0 + g.ldstep*(k - k % g.trip); o.append(i)
        def sph(q):
            for i in g.s_phase(q): o.append(i); nm[0] += 1
            o.extend(g.softmax(q))
        if not first: sph(3)
        kk = [0]
        def nxt():
            k = kk[0] + R
            o.append(g.rd(k, first, dl=(-40 + k - 144) if k >= 144 else None)); kk[0] += 1
        for j in range(6):
            def acc(b, t): return vTACC + 24*(j & 1) + 12*b + 4*t if t < 3 else vU + 8*(2*(j & 1) + b) + 4
            for st in range(6):
                for b in range(2):
                    for t in range(NT):
                        d = v(acc(b, t), 4)
                        M(d, g.slot(kk[0]), X(t, st), d if st else None)
                    nxt()
            for t in range(3):
                dst = TPK(t, j)[1]
                for b in range(2):
                    o.append(VA("v_cvt_pk_bf16_f32", v(dst+2*b), v(acc(b, t)), v(acc(b, t)+1)))
                    o.append(VA("v_cvt_pk_bf16_f32", v(dst+2*b+1), v(acc(b, t)+2), v(acc(b, t)+3)))
            if first:
                for b in range(2):
                    for hh in range(2):
                        tmp = vSPARE + 4*(j & 1) + 2*b + hh
                        o.append(VA("v_cvt_pk_bf16_f32", v(tmp), v(acc(b, 3)+2*hh), v(acc(b, 3)+2*hh+1)))
                        o.append(VA("v_accvgpr_write_b32", a(aTL + 4*j + 2*b + hh), v(tmp)))
        if first: sph(3)
        for q in range(3): sph(q)
        poolA = [vSPARE + 2*i for i in range(6)] + [vTPK + 2*i for i in range(4)] + [Sreg(3, 1), Sreg(3, 1)+2, Sreg(3, 3), Sreg(3, 3)+2]
        poolB = [Sreg(q, kt) + 2*h for q in range(3) for kt in (1, 3) for h in range(2)] + poolA[:2]
        def ucvt(ai, accb):
            if first: o.append(VA("v_cvt_pk_bf16_f32", v(vU + 8*ai + 6), v(vU + 8*ai + 4), v(vU + 8*ai + 5)))
            for t in range(3):
                o.append(VA("v_cvt_pk_bf16_f32", v(vU + 8*ai + 2*t), v(accb+4*t), v(accb+4*t+1)))
                o.append(VA("v_cvt_pk_bf16_f32", v(vU + 8*ai + 2*t + 1), v(accb+4*t+2), v(accb+4*t+3)))
        def umf(ai, st, accb):
            for t in range(NT):
                d = v(accb + 4*t, 4) if t < 3 else v(vU + 8*ai + 4, 4)
                M(d, X(t, st), g.slot(kk[0]), d if st else None)
            nxt()
        for gr in range(3):
            if gr < 2:
                for k in range(4):
                    accb = vTACC + (24 if k & 1 else 36)
                    for st in range(6): umf(4*gr+k, st, accb)
                    ucvt(4*gr+k, accb)
            else:
                ab = [vTACC+36, vTACC, vTACC+12, vTACC+24]
                for st in range(6):
                    for k in range(4):
                        umf(8+k, st, ab[k])
                        if st == 5: ucvt(8+k, ab[k])
                for u in range(9):
                    tr = g.transp_from(u, ("a", aRAW), dl_r=-60 + 4*u)
                    tr[0].nb = tr[1].nb = g.tr_nb + (tot - 624)
                    o += tr
            pool = poolB if gr == 1 else (poolA if gr == 0 else poolA[2:] + poolA[:2])
            pi = 0; m0_ = nm[0]
            for qi, q in enumerate(QORD()):
                ob = vTACC + 16*(qi & 1)
                for ks in range(2):
                    for k in range(4):
                        d = v(ob + 4*k, 4)
                        M(d, v(Sreg(q, 2*ks), 4), v(vU + 8*(4*gr+k) + 4*ks, 4), d if ks else None)
                for r in range(2 if q == 3 else 4):
                    op = pool[pi]
                    for k in range(2):
                        o.append(VA("v_cvt_pk_bf16_f32", v(op+k), v(ob + 8*k + r), v(ob + 8*k + 4 + r)))
                    if q == 3: ad, sb, im = vLS[r], sB[0], 0
                    elif q == 0: ad, sb, im = vSA[0], sB[0], 384*r
                    elif q == 1: ad, sb, im = vSA[1], sB[r], 0
                    else: ad, sb, im = vSA[2], sB[r >> 1], 384*(r & 1)
                    i = GS(v(op, 2), ad, sO, s(sb), im + 128*gr, g.nts)
                    if gr < 2: i.nb = m0_ + g.st0 + g.ststep*pi
                    o.append(i); pi += 1
        assert nm[0] == tot and kk[0] == 144
        o += g.next_window()
        return o

    def prologue(g):
        o = []; A = o.append
        A(F("s_cmp_ge_u32 s2, 256")); A(F("s_cbranch_scc1 L_end"))
        A(F("s_load_dwordx2 s[4:5], s[0:1], 0")); A(F("s_load_dwordx2 s[6:7], s[0:1], 24")); A(F("s_load_dwordx2 s[24:25], s[0:1], 40"))
        T = [vTACC+k for k in range(16)]
        A(VA("v_lshrrev_b32", v(T[0]), 6, v(0)))
        A(VA("v_and_b32", v(0), 63, v(0)))
        A(VA("v_readfirstlane_b32", s(sWAVE), v(T[0])))
        vi, vg = T[1], T[2]
        A(VA("v_and_b32", v(vi), 15, v(0))); A(VA("v_lshrrev_b32", v(vg), 4, v(0)))
        A(VA("v_lshlrev_b32", v(vWB[0]), 4, v(0)))
        A(SA("s_lshl_b32", s(sGW), s(2), 2)); A(SA("s_add_u32", s(sGW), s(sGW), s(sWAVE)))
        A(VA("v_lshrrev_b32", v(T[4]), 5, v(0)))
        A(VA("v_bfe_u32", v(T[5]), v(0), 3, 2))
        A(VA("v_and_b32", v(T[6]), 7, v(0))); A(VA("v_lshlrev_b32", v(T[6]), 4, v(T[6])))
        A(SA("s_mov_b32", s(sK), ROW, scc_w=False)); A(SA("s_movk_i32", s(sM0), 384, scc_w=False))
        def origin(dst, t, vsh):
            A(SA("s_mov_b32", s(sT[0]), lut(t), scc_w=False))
            A(VA("v_lshrrev_b32", v(T[8]), v(vsh), s(sT[0])))
            A(VA("v_bfe_u32", v(T[9]), v(T[8]), 3, 3)); A(VA("v_and_b32", v(T[8]), 7, v(T[8])))
            A(VA("v_mul_u32_u24", v(T[9]), ROW, v(T[9])))
            A(VA("v_mad_u32_u24", v(dst), v(T[8]), s(sM0), v(T[9])))
        A(VA("v_mad_u32_u24", v(T[10]), v(T[5]), s(sM0), v(T[6])))
        A(VA("v_mad_u32_u24", v(T[11]), v(T[5]), s(sK), v(T[6])))
        A(VA("v_lshrrev_b32", v(T[12]), 1, v(T[5]))); A(VA("v_mad_u32_u24", v(T[12]), v(T[12]), s(sK), v(T[6])))
        A(VA("v_and_b32", v(T[13]), 1, v(T[5]))); A(VA("v_mad_u32_u24", v(T[12]), v(T[13]), s(sM0), v(T[12])))
        for b in range(2):
            A(VA("v_lshlrev_b32", v(T[7]), 3, v(T[4])))
            if b: A(VA("v_add_u32", v(T[7]), 16, v(T[7])))
            for t in range(3):
                origin(vLA[2*t+b], t, T[7])
                A(VA("v_add_u32", v(vLA[2*t+b]), v(vLA[2*t+b]), v(T[10+t])))
        A(SA("s_mov_b32", s(sW), s(sGW), scc_w=False)); A(SA("s_mov_b32", s(sN), 0, scc_w=False))
        o += g.winbase(sB[0], sW)
        A(SA("s_lshr_b32", s(sRB), s(2), 3)); A(SA("s_and_b32", s(sRB), s(sRB), 15)); A(SA("s_lshl_b32", s(sRB), s(sRB), 12))
        A(SA("s_lshl_b32", s(sT[0]), s(sWAVE), 10)); A(SA("s_add_u32", s(sRB), s(sRB), s(sT[0])))
        A(SA("s_and_b32", s(sRB2), s(sRB), "0x1fff")); A(SA("s_add_u32", s(sRB2), s(sRB2), "0x10000"))
        A(F("s_waitcnt lgkmcnt(0)", wr=["s4", "s5", "s6", "s7", "s24", "s25"]))
        def srd(srd, lo, sz):
            A(SA("s_mov_b32", s(srd), s(lo), scc_w=False)); A(SA("s_mov_b32", s(srd+1), s(lo+1), scc_w=False))
            A(SA("s_mov_b32", s(srd+2), sz, scc_w=False)); A(SA("s_mov_b32", s(srd+3), "0x20000", scc_w=False))
        srd(sXP, 4, XB); srd(sWS, 24, WSB)
        f = []; A = f.append
        A(VA("v_lshrrev_b32", v(T[4]), 2, v(vi))); A(VA("v_lshlrev_b32", v(T[4]), 1, v(T[4])))
        A(VA("v_and_b32", v(T[5]), 1, v(vi))); A(VA("v_add_u32", v(T[4]), v(T[4]), v(T[5])))
        if g.tail:
            A(SA("s_sub_u32", s(sT[1]), s(2), s(sGW)))
            A(VA("v_cmp_eq_u32", "vcc", 5, v(T[4]))); A(VA("v_mov_b32", v(T[5]), s(sT[1]))); A(VA("v_cndmask_b32", v(T[5]), 0, v(T[5]), "vcc"))
        A(VA("v_lshlrev_b32", v(T[4]), 10, v(T[4]))); A(VA("v_add_u32", v(T[4]), s(sGW), v(T[4])))
        if g.tail: A(VA("v_add_u32", v(T[4]), v(T[4]), v(T[5])))
        A(SA("s_mov_b32", s(sT[0]), 58835169, scc_w=False))
        A(VA("v_mul_hi_u32", v(T[5]), v(T[4]), s(sT[0])))
        A(VA("v_mul_u32_u24", v(T[6]), 73, v(T[5]))); A(VA("v_sub_u32", v(T[6]), v(T[4]), v(T[6])))
        A(VA("v_mul_u32_u24", v(T[5]), 7*ROW, v(T[5]))); A(VA("v_mul_u32_u24", v(T[6]), 7*384, v(T[6])))
        A(VA("v_add_u32", v(T[3]), v(T[5]), v(T[6])))
        A(VA("v_lshlrev_b32", v(T[5]), 4, v(vg))); A(VA("v_add_u32", v(T[3]), v(T[3]), v(T[5])))
        A(VA("v_add_u32", v(T[3]), CENTER, v(T[3])))
        A(VA("v_mov_b32", v(vOOB), "0x80000000")); A(VA("v_mov_b32", v(vNINF), "0xff800000"))
        A(VA("v_and_b32", v(T[5]), 2, v(vi))); A(VA("v_lshlrev_b32", v(T[5]), 14, v(T[5])))
        A(VA("v_add_u32", v(T[4]), v(T[4]), v(T[5])))
        A(VA("v_cmp_gt_u32", "vcc", NWIN, v(T[4])))
        A(VA("v_cndmask_b32", v(T[3]), v(vOOB), v(T[3]), "vcc"))
        for st in range(6): A(GL(a(aXL + 4*st, 4), T[3], sXP, 0, 64*st))
        f1 = f; f = []; A = f.append
        srd(sO, 6, XB)
        A(VA("v_lshlrev_b32", v(T[7]), 3, v(vg)))
        A(VA("v_lshlrev_b32", v(T[14]), 3, v(vi)))
        for t in range(3):
            origin(vSA[t], t, T[7])
            A(VA("v_add_u32", v(vSA[t]), v(vSA[t]), v(T[14])))
        A(VA("v_add_u32", v(vLSb), CENTER, v(T[14])))
        A(VA("v_lshlrev_b32", v(vG2), 1, v(vg)))
        A(VA("v_add_u32", v(vWB[1]), "0x10000", v(vWB[0]))); A(VA("v_add_u32", v(vWB[2]), "0x20000", v(vWB[0])))
        A(VA("v_mov_b32", v(vBIAS+2), 0)); A(VA("v_mov_b32", v(vBIAS+3), 0))
        A(SA("s_lshl_b32", s(sT[0]), s(sWAVE), 12)); A(SA("s_add_u32", s(sT[0]), s(sT[0]), WSB))
        A(VA("v_and_b32", v(T[8]), 7, v(0))); A(VA("v_xor_b32", v(T[8]), v(T[8]), v(vg))); A(VA("v_lshlrev_b32", v(T[8]), 4, v(T[8])))
        A(VA("v_lshrrev_b32", v(T[9]), 3, v(0))); A(VA("v_lshlrev_b32", v(T[9]), 7, v(T[9])))
        A(VA("v_add3_u32", v(vSW[0]), v(T[8]), v(T[9]), s(sT[0])))
        A(VA("v_xor_b32", v(vSW[1]), 64, v(vSW[0]))); A(VA("v_add_u32", v(vSW[1]), "0x400", v(vSW[1])))
        A(VA("v_lshrrev_b32", v(T[8]), 1, v(vi))); A(VA("v_xor_b32", v(T[8]), v(T[8]), v(vg))); A(VA("v_lshlrev_b32", v(T[8]), 4, v(T[8])))
        A(VA("v_lshlrev_b32", v(T[9]), 7, v(vi)))
        A(VA("v_add3_u32", v(vSR[0]), v(T[8]), v(T[9]), s(sT[0])))
        A(VA("v_xor_b32", v(vSR[1]), 64, v(vSR[0])))
        A(SA("s_add_u32", s(sWn), s(sW), 1024))
        f += g.winbase(sBn, sWn)
        f += g.masks()
        f2 = f
        def seq_I():
            o = []; mk = 0
            for k in range(18):
                o.append(g.xload(k, sB[0], dst=("v", vX0)))
                want = min(18, -(-(k+1)*18 // g.mlast))
                while mk < want: o += g.dma_piece(0, mk); mk += 1
                if k == 3: o += f1
                if k == 7: o += f2
            return o
        def seq_MX():
            o = []
            for k in range(18):
                o += g.dma_piece(0, k)
                if k == 3: o += f1
                if k == 7: o += f2
            for k in range(18): o.append(g.xload(k, sB[0], dst=("v", vX0)))
            return o
        def seq_XM():
            o = []
            for k in range(18):
                o.append(g.xload(k, sB[0], dst=("v", vX0)))
                if k == 3: o += f1
                if k == 7: o += f2
            for k in range(18): o += g.dma_piece(0, k)
            return o
        def p1(ub):
            o = []
            for u in range(10):
                if u == ub:
                    o.append(I("s_barrier", "B", rd=[f"Wd0_{k}" for k in range(18)]))
                    for k in range(g.ring): o.append(g.rd(k, True))
                if u < 9: o += g.transp_from(u, ("v", vX0))
            return o
        if g.pro == "MX3":
            f1a, f1b = f1[:-6], f1[-6:]
            xl = g.xlpos; n1 = g.n1
            for k in range(18): o += g.dma_piece(0, k)
            if g.bar1: o.append(I("s_barrier", "B"))
            for k in range(n1):
                o.append(g.xload(k, sB[0]))
                if k == 5: o += f1a + f2
                if xl == k + 1: o += f1b
            q = [I("s_barrier", "B", rd=[f"Wd0_{k}" for k in range(18)])] + [g.rd(k, True) for k in range(g.ring)]
            for k in range(n1, 18):
                q.append(g.xload(k, sB[0]))
                if xl == k + 1: q += f1b
            for m in range(3): q += g.transp_from(3*m, ("a", aRAW))
            return dict(p0=o, p1=q)
        x1 = [g.xload(k, sBn) for k in range(g.c1)]
        if g.pro == "I": return dict(p0=o + seq_I() + x1, p1=p1(min(9, (g.mlast + 1)//2)))
        if g.pro == "MX": return dict(p0=o + seq_MX() + x1, p1=p1(0))
        if g.pro == "XM": return dict(p0=o + seq_XM() + x1, p1=p1(9))
        o += [F(f"s_bitcmp1_b32 s2, {g.pro[2:] or 3}"), F("s_cbranch_scc1 L_xm")]
        return dict(p0=o, p1=seq_MX() + x1 + p1(0) + [F("s_branch L_b0")], p1b=[F("L_xm:")] + seq_XM() + x1 + p1(9) + [F("L_b0:")])

    def stamp_out(g, k):
        nb = [f"s_memtime s[{SD+2*k}:{SD+1+2*k}]", "s_memrealtime s[78:79]", "s_waitcnt lgkmcnt(0)"]
        for i in range(14): nb.append(f"v_writelane_b32 v{vTMP}, s{SD+2*i}, {i}")
        nb.append(f"v_writelane_b32 v{vTMP}, s76, 14"); nb.append(f"v_writelane_b32 v{vTMP}, s78, 15")
        nb += ["s_mov_b32 s80, s24", "s_mov_b32 s81, s25", "s_mov_b32 s82, 0x10000000", "s_mov_b32 s83, 0x20000",
               f"s_mul_i32 s84, s{sGW}, 6", f"s_add_u32 s84, s84, s{sN}", "s_sub_u32 s84, s84, 1", "s_lshl_b32 s84, s84, 8", "s_add_u32 s84, s84, 0x40000",
               "s_mov_b64 exec, 0xffff", f"buffer_store_dword v{vTMP}, v{vWB[0]}, s[80:83], s84 offen", "s_mov_b64 exec, -1"]
        return nb

    def main_kernel(g):
        assert 144 % g.ring == 0
        B = g.prologue()
        B["b0"], _ = schedule(g.body(True), g.lds_lat, verbose=True, name="b0")
        body, _ = schedule(g.body(False), g.lds_lat, verbose=True, name="body")
        cmp_ = F(f"s_cmp_lt_u32 s{sW}, {NWIN}", rd=[f"s{sW}"])
        B["body"] = [F(".p2align 6"), F("L_loop:")] + body + [cmp_, F("s_cbranch_scc1 L_loop")]
        order = ["p0", "p1", "b0", "body"]
        paths = [order + ["body", "body"]]
        if "p1b" in B:
            order = ["p0", "p1", "p1b", "b0", "body"]
            paths.append(["p0", "p1b", "b0", "body", "body", "body"])
        B = insert_waits(B, paths)
        B, nn = fix_hazards(B, paths)
        T = {b: [c.txt for c in B[b]] for b in B}
        if g.diag:
            T["p0"].insert(2, f"s_memtime s[{SD}:{SD+1}]"); T["p0"].insert(3, "s_memrealtime s[76:77]")
            T["p0"].append(f"s_memtime s[{SD+2}:{SD+3}]")
            T["p1b" if "p1b" in T else "p1"].append(f"s_memtime s[{SD+4}:{SD+5}]")
            for b, marks in (("b0", g.diag[0]), ("body", g.diag[1])):
                nb = []; m = 0; k = 3
                for t in T[b]:
                    if t.startswith("v_mfma"):
                        if m in marks: nb.append(f"s_memtime s[{SD+2*k}:{SD+1+2*k}]"); k += 1
                        m += 1
                    if t == cmp_.txt and b == "body": nb += g.stamp_out(k)
                    nb.append(t)
                if b == "b0": nb += g.stamp_out(k)
                assert k < 14
                T[b] = nb
        o = [f".globl {KN}", ".p2align 8", f".type {KN},@function", f"{KN}:"]
        for b in order: o += T[b]
        o += ["L_end:", "s_endpgm"]
        return o

def prep_kernel2():
    o = prep_kernel()
    i0 = o.index("s_cmp_ge_u32 s28, 6")
    assert o[i0+1:i0+5] == ["s_cselect_b32 s32, 90, 0", "s_add_u32 s32, s32, s28", "s_lshl_b32 s32, s32, 1", "v_mul_u32_u24 v6, 12, v1"]
    o[i0:i0+5] = ["s_lshr_b32 s32, s28, 2", "s_lshl_b32 s32, s32, 6", "s_and_b32 s33, s28, 3", "s_add_u32 s32, s32, s33", "s_lshl_b32 s32, s32, 1",
                  "v_lshlrev_b32 v6, 3, v1"]
    return o

def build2(path, **kw):
    g = Gen2(**kw)
    hdr = open("standalone__swin_window_attn__vision.s.ref").read().split("\n")[:7]
    o = hdr + [f"; @launch kernel={PN} grid=(144,1,1) block=(64,1,1) lds=0",
               f"; @launch kernel={KN} grid=(256,1,1) block=(256,1,1) lds=163840",
               '.amdgcn_target "amdgcn-amd-amdhsa--gfx950"', ".text"]
    o += g.main_kernel() + prep_kernel2()
    o += ['.section .rodata,"a"'] + kd(KN, 512, 256, 96) + kd(PN, 136, 136, 40)
    open(path, "w").write("\n".join(o) + "\n")

if __name__ == "__main__":
    kw = eval("dict(" + (sys.argv[2] if len(sys.argv) > 2 else "") + ")")
    build2(sys.argv[1], **kw)
```

```python
import re

def regs(f, i, n=1):
    return [f"{f}{k}" for k in range(i, i+n)]
def rt(f, i, n=1):
    return f"{f}{i}" if n == 1 else f"{f}[{i}:{i+n-1}]"

COST = dict(M=1, V=1, T=2, X=2, DR=1, DW=5, GL=1, GD=1, GS=1, S=1, F=1, B=1, DW2=2)
VALU = ("V", "T", "X")

class I:
    def __init__(s, txt, k, rd=(), wr=(), c=(), dl=None, vm=None, lg=None, wide=False):
        s.txt = txt; s.k = k; s.rd = set(rd); s.wr = set(wr); s.c = set(c)
        s.rd |= s.c
        s.dl = dl; s.vm = vm; s.lg = lg; s.wide = wide; s.nb = None
    def __repr__(s): return s.txt

def is_sreg(r): return r[0] == "s" or r in ("vcc", "m0")

def edge_ws(p, c):
    raw = p.wr & c.rd; war = p.rd & c.wr; waw = p.wr & c.wr
    if not (raw or war or waw): return None
    ws = 0
    if p.k == "M":
        if c.k == "M":
            if raw - c.c: ws = max(ws, 8)
            elif raw and p.wr != c.c: ws = max(ws, 6)
        else:
            if raw or waw: ws = max(ws, 8)
            if (p.c & c.wr) and c.k in VALU: ws = max(ws, 3)
    if p.k in VALU:
        vraw = {r for r in raw if r[0] in "va" and r != "vcc"}
        sraw = {r for r in raw if is_sreg(r)}
        if vraw:
            if c.k == "M": ws = max(ws, 2)
            if c.k == "X": ws = max(ws, 2)
            if p.k == "T" and c.k in ("V", "X"): ws = max(ws, 1)
            if "readfirstlane" in c.txt or "readlane" in c.txt: ws = max(ws, 1)
        if sraw:
            if c.k in VALU: ws = max(ws, 2)
            elif c.k in ("GL", "GD", "GS"): ws = max(ws, 5)
            else: ws = max(ws, 4)
    if p.k == "GS" and p.wide and war: ws = max(ws, 2)
    if p.k == "S" and "m0" in raw and c.k == "GD": ws = max(ws, 1)
    return ws

def edge_lat(p, c, lds_lat):
    raw = p.wr & c.rd
    real = {r for r in raw if r[0] in "vas"}
    if p.k == "M" and c.k != "M" and (raw or (p.wr & c.wr)): return 7
    if p.k == "DR" and real: return lds_lat
    if p.k == "GL" and real: return 200
    return COST[p.k]

def schedule(seq, lds_lat=36, end_slack=None, verbose=False, name=""):
    n = len(seq)
    preds = [[] for _ in range(n)]; succs = [[] for _ in range(n)]
    lastw = {}; readers = {}
    for i, c in enumerate(seq):
        ps = set()
        for r in c.rd:
            if r in lastw: ps.add(lastw[r])
        for r in c.wr:
            if r in lastw: ps.add(lastw[r])
            ps.update(readers.get(r, ()))
        ps.discard(i)
        for j in ps:
            w = edge_ws(seq[j], c); l = edge_lat(seq[j], c, lds_lat)
            preds[i].append((j, w or 0, l)); succs[j].append((i, w or 0, l))
        for r in c.rd: readers.setdefault(r, []).append(i)
        for r in c.wr: lastw[r] = i; readers[r] = []
    midx = [i for i in range(n) if seq[i].k == "M"]
    mpos = {i: k for k, i in enumerate(midx)}
    END = 4*len(midx) + 8
    LS = [0]*n
    for i in range(n-1, -1, -1):
        c = seq[i]
        if c.k == "M": LS[i] = 4*mpos[i]; continue
        v = END + (c.dl if c.dl is not None else 0) if (c.dl is not None or not succs[i]) else 10**9
        for (j, w, l) in succs[i]:
            v = min(v, LS[j] - max(l, (w*4+2)//3))
        LS[i] = v
    done_t = [None]*n; done_n = [None]*n
    out = []; t = 0; last_m = -100; nm = 0
    remaining = set(i for i in range(n) if seq[i].k != "M")
    npend = [len(preds[i]) for i in range(n)]
    avail = set(i for i in remaining if npend[i] == 0)
    gap_valu = False; gap_n = 0
    stalls = 0
    VM = ("GL", "GD", "GS")
    def ready(i, tt, cnt):
        for (j, w, l) in preds[i]:
            if done_t[j] is None: return False
            if tt < done_t[j] + l: return False
            if cnt - done_n[j] - 1 < w: return False
        return True
    def ws_only(i, tt):
        blk = False
        for (j, w, l) in preds[i]:
            if done_t[j] is None or tt + 2 < done_t[j] + l: return False
            if len(out) - done_n[j] - 1 < w: blk = True
        return blk
    def emit(i):
        nonlocal t
        done_t[i] = t; done_n[i] = len(out); out.append(seq[i])
        for (j, w, l) in succs[i]:
            npend[j] -= 1
            if npend[j] == 0 and seq[j].k != "M": avail.add(j)
    def nb_ok(c): return not (c.nb is not None and nm <= c.nb and mi is not None)
    while nm < len(midx) or remaining:
        mi = midx[nm] if nm < len(midx) else None
        if mi is not None and t >= last_m + 4 and ready(mi, t, len(out)):
            if nm > 0 and t > last_m + 4: stalls += t - last_m - 4
            emit(mi); last_m = t; nm += 1; t += 1; gap_valu = False; gap_n = 0
            continue
        scalar_only = (t == last_m + 1)
        m_ok_soon = mi is not None and all(done_t[j] is not None for (j, w, l) in preds[mi])
        room = (last_m + 4 - t) if (mi is not None and m_ok_soon) else 99
        if scalar_only and gap_n == 0:
            vm = [i for i in avail if seq[i].k in VM and nb_ok(seq[i]) and ready(i, t+1, len(out))]
            urg = [i for i in avail if seq[i].k not in VM and seq[i].k not in ("S", "B") and LS[i] <= t + 4 and nb_ok(seq[i])]
            if vm and len(urg) < 2:
                i = min(vm, key=lambda i: (LS[i], i))
                t += 1; avail.discard(i); remaining.discard(i); emit(i); gap_n += 1; t += 1
                if seq[i].k == "GS": last_m += 1; t += 1; stalls += 1
                continue
        best = None
        for i in avail:
            c = seq[i]
            if scalar_only and c.k not in ("S", "B"): continue
            if not nb_ok(c): continue
            if not ready(i, t, len(out)): continue
            cost = COST[c.k]
            urgent = LS[i] <= t + 2
            if room > 0 and room < 99 and cost > room and not urgent and c.k != "DW": continue
            if c.k == "DW" and room < 99 and room != 2 and room > 0 and not urgent: continue
            if c.k in VM and 0 < room < 99 and not urgent: continue
            if gap_valu and c.k in ("DR", "DW", "DW2", "GL", "GS", "GD") and room < 99 and not urgent: continue
            key = (LS[i] - (3 if (c.k in ("DR",) and not gap_valu) else 0), i)
            if best is None or key < best[0]: best = (key, i)
        if best is not None:
            i = best[1]; avail.discard(i); remaining.discard(i)
            emit(i); gap_n += 1
            if seq[i].k in VALU: gap_valu = True
            t += COST[seq[i].k]
            continue
        cand = ([mi] if mi is not None else []) + [i for i in avail if nb_ok(seq[i])]
        if any(ws_only(i, t) for i in cand):
            out.append(I("s_nop 0", "S")); gap_n += 1
        t += 1
    if verbose:
        print(f"; sched {name}: {len(midx)} mfma, {n} instrs, est slots {t} ({4*t} cyc), mfma-bound {16*len(midx)}, stall slots {stalls}")
    return out, t

def insert_waits(blocks, path, hoist=True):
    waits = {}
    paths = path if isinstance(path[0], list) else [path]
    path = []
    for p_ in paths: path += ["#"] + p_
    changed = True
    while changed:
        changed = False
        for b in path:
            if b == "#":
                cnt = dict(vm=0, lg=0); done = dict(vm=0, lg=0); pend = {}
                continue
            L = blocks[b]
            hist = []
            lastM = None
            for pos, c in enumerate(L):
                hist.append(dict(cnt))
                w = waits.get((b, pos))
                if w:
                    if w[0] is not None: done["vm"] = max(done["vm"], cnt["vm"] - w[0])
                    if w[1] is not None: done["lg"] = max(done["lg"], cnt["lg"] - w[1])
                if c.k == "F":
                    if c.vm is not None: done["vm"] = max(done["vm"], cnt["vm"] - c.vm)
                    if c.lg is not None: done["lg"] = max(done["lg"], cnt["lg"] - c.lg)
                    lastM = None
                need = dict(vm=0, lg=0)
                for r in (c.rd | c.wr):
                    if r in pend:
                        cls, k = pend[r]
                        if r not in c.rd and ((cls == "vm" and c.k == "GL") or (cls == "lg" and c.k == "DR")): continue
                        if k > done[cls]: need[cls] = max(need[cls], k)
                for ci, cls in enumerate(("vm", "lg")):
                    k = need[cls]
                    if k:
                        p = pos
                        if hoist and lastM is not None:
                            q_ = lastM + 1
                            if q_ < pos and L[q_].k in ("GL", "GD", "GS"): q_ += 1
                            if hist[q_][cls] >= k: p = q_
                        N = min(hist[p][cls] - k, 63 if cls == "vm" else 15)
                        w = waits.setdefault((b, p), [None, None])
                        if w[ci] is None or N < w[ci]: w[ci] = N; changed = True
                        done[cls] = max(done[cls], hist[p][cls] - N)
                for r in c.wr: pend.pop(r, None)
                if c.k in ("GL", "GD", "GS"):
                    cnt["vm"] += 1
                    if c.k in ("GL", "GD"):
                        for r in c.wr: pend[r] = ("vm", cnt["vm"])
                elif c.k in ("DR", "DW", "DW2"):
                    cnt["lg"] += 1
                    if c.k == "DR":
                        for r in c.wr:
                            if r[0] in "va": pend[r] = ("lg", cnt["lg"])
                    else:
                        for r in c.wr:
                            if r[0] == "P": pend[r] = ("lg", cnt["lg"])
                if c.k == "M": lastM = pos
    out = {}
    for b, L in blocks.items():
        o = []
        for pos, c in enumerate(L):
            w = waits.get((b, pos))
            if w:
                s = "s_waitcnt" + (f" vmcnt({w[0]})" if w[0] is not None else "") + (f" lgkmcnt({w[1]})" if w[1] is not None else "")
                o.append(I(s, "S"))
            o.append(c)
        out[b] = o
    return out

def fix_hazards(blocks, path):
    nops = {}
    paths = path if isinstance(path[0], list) else [path]
    path = []
    for p_ in paths: path += ["#"] + p_
    changed = True
    while changed:
        changed = False
        for b in path:
            if b == "#":
                lin = []
                continue
            for pos, c in enumerate(blocks[b]):
                k = nops.get((b, pos), 0)
                if k: lin.append((None, k))
                if c.txt.endswith(":") or c.txt.startswith("."):
                    continue
                dist = 0; need = 0
                for (p, st) in reversed(lin[-14:]):
                    if p is not None:
                        w = edge_ws(p, c)
                        if w and w > dist: need = max(need, w - dist)
                    dist += st
                    if dist >= 10: break
                if need:
                    nops[(b, pos)] = k + need; changed = True
                    lin.append((None, need))
                m = re.match(r"s_nop (\d+)", c.txt)
                lin.append((c, int(m.group(1)) + 1 if m else 1))
    out = {}; tot = 0
    for b, L in blocks.items():
        o = []
        for pos, c in enumerate(L):
            k = nops.get((b, pos), 0)
            if k: o.append(I(f"s_nop {k-1}", "S")); tot += 1
            o.append(c)
        out[b] = o
    return out, tot
```

```python
import sys
from gen2 import *

sBp = [44, 45, 46, 47]
P0 = [Sreg(q, kt) + 2*h for q in range(2) for kt in (1, 3) for h in range(2)] + [vSPARE + 2*i for i in range(6)]
P1 = [vTPK + 2*i for i in range(4)] + [Sreg(q, kt) + 2*h for q in (3, 2) for kt in (1, 3) for h in range(2)] + P0[:2]
P2 = P1[:2] + P0[2:]
NTAIL = NWIN - 5120

class Gen3(Gen2):
    def __init__(g, ds0=0, dstep=5, ld0=60, ldstep=14, st0=8, ststep=5.5, wstep=12, x10=216, x1step=8, tA=24, wbar=350, tr_nb=470, c1=0, xlpos=18, aord=1, n1=12, bar1=1, **kw):
        g.xlpos = xlpos; g.aord = aord; g.n1 = n1; g.bar1 = bar1
        Gen2.__init__(g, ld0=ld0, ldstep=ldstep, st0=st0, ststep=ststep, wstep=wstep, lord='h', tail=True, tr_nb=tr_nb, c1=c1, **kw)
        g.ds0 = ds0; g.dstep = dstep; g.x10 = x10; g.x1step = x1step; g.tA = tA; g.wbar = wbar
    def rdf(g, k, f, toks=(), dl=None):
        b, o = frag_lds(f)
        return DSR(g.slot(k), b, o, list(toks), dl=dl)
    def st_addr(g, q, r, B):
        if q == 3: return vLS[r], B[0], 0
        if q == 0: return vSA[0], B[0], 384*r
        if q == 1: return vSA[1], B[r], 0
        return vSA[2], B[r >> 1], 384*(r & 1)
    def out_cvt(g, ob, op, r):
        return [VA("v_cvt_pk_bf16_f32", v(op+k), v(ob + 8*k + r), v(ob + 8*k + 4 + r)) for k in range(2)]
    def deferred(g, paced=True):
        o = []
        for r in range(4): o += g.out_cvt(vTACC + 16, P2[10+r], r)
        for i in range(12):
            q, r = divmod(i, 4)
            ad, sb, im = g.st_addr(q, r, sBp)
            x = GS(v(P2[2+i], 2), ad, sO, s(sb), im + 256, g.nts)
            if paced: x.nb = g.ds0 + g.dstep*i
            o.append(x)
        return o

    def body(g, first):
        o = []; R = g.ring
        nm = [0]
        def M(*x): nm[0] += 1; o.append(MF(*x))
        NT = 4 if first else 3
        tot = 624 + (144 if first else 0)
        seq = (list(range(72))*3 if first else list(range(72))) + g.seq[72:]
        nW = len(seq) - 72
        kk = [0]
        def nxt():
            k = kk[0] + R; kk[0] += 1
            if k >= len(seq): o.append(g.rdf(k, k - len(seq), dl=-40 + k - len(seq)))
            else: o.append(g.rdf(k, seq[k], ["Wrdy"] if (first and k >= nW) else []))
        def sph(q):
            for i in g.s_phase(q): o.append(i); nm[0] += 1
            o.extend(g.softmax(q))
        def tphase(tiles):
            n = len(tiles)
            for j in range(6):
                def acc(b, x): return vTACC + 8*n*(j & 1) + 4*n*b + 4*x
                for st in range(6):
                    for b in range(2):
                        for x, t in enumerate(tiles):
                            d = v(acc(b, x), 4)
                            M(d, g.slot(kk[0]), X(t, st), d if st else None)
                        nxt()
                for x, t in enumerate(tiles):
                    for b in range(2):
                        for hh in range(2):
                            if t < 3:
                                o.append(VA("v_cvt_pk_bf16_f32", v(TPK(t, j)[1]+2*b+hh), v(acc(b, x)+2*hh), v(acc(b, x)+2*hh+1)))
                            else:
                                tmp = vSPARE + 4*(j & 1) + 2*b + hh
                                o.append(VA("v_cvt_pk_bf16_f32", v(tmp), v(acc(b, x)+2*hh), v(acc(b, x)+2*hh+1)))
                                o.append(VA("v_accvgpr_write_b32", a(aTL + 4*j + 2*b + hh), v(tmp)))
        if not first: o += g.deferred()
        o += [SA("s_add_u32", s(sB[r]), s(sB[0]), r*ROW) for r in range(1, 4)]
        if first:
            for k in range(18):
                p = g.dma_piece(1, k)
                for i in p[:-1]: i.nb = g.wstep*k - 4
                p[-1].nb = g.wstep*k
                o += p
            bar = I("s_barrier", "B", rd=[f"Wd1_{k}" for k in range(18)], wr=["Wrdy"]); bar.nb = g.wbar
            o.append(bar)
            ph = [[3, 0], [1], [2]] if g.aord == 0 else [[0], [1], [2, 3]]
            for tl in ph:
                for t in tl:
                    if t in (1, 2):
                        for m in range(3):
                            tr = g.transp_from(3*m + t, ("a", aRAW))
                            tr[0].nb = tr[1].nb = nm[0] - g.tA
                            o += tr
                tphase(tl)
            for k in range(18):
                i = g.xload(k, sBn); i.nb = g.x10 + g.x1step*(k - k % g.trip); o.append(i)
            sph(3)
        else:
            for k in range(18):
                i = g.xload(k, sBn); i.nb = g.ld0 + g.ldstep*(k - k % g.trip); o.append(i)
            sph(3)
            tphase([0, 1, 2])
        for q in range(3): sph(q)
        def ucvt(ai, accb):
            if first: o.append(VA("v_cvt_pk_bf16_f32", v(vU + 8*ai + 6), v(vU + 8*ai + 4), v(vU + 8*ai + 5)))
            for t in range(3):
                o.append(VA("v_cvt_pk_bf16_f32", v(vU + 8*ai + 2*t), v(accb+4*t), v(accb+4*t+1)))
                o.append(VA("v_cvt_pk_bf16_f32", v(vU + 8*ai + 2*t + 1), v(accb+4*t+2), v(accb+4*t+3)))
        def umf(ai, st, accb):
            for t in range(NT):
                d = v(accb + 4*t, 4) if t < 3 else v(vU + 8*ai + 4, 4)
                M(d, X(t, st), g.slot(kk[0]), d if st else None)
            nxt()
        si = [0]
        def pv(gr, pool, m0_):
            pi = 0
            for qi, q in enumerate(QORD()):
                ob = vTACC + 16*(qi & 1)
                for ks in range(2):
                    for k in range(4):
                        d = v(ob + 4*k, 4)
                        M(d, v(Sreg(q, 2*ks), 4), v(vU + 8*(4*gr+k) + 4*ks, 4), d if ks else None)
                for r in range(2 if q == 3 else 4):
                    op = pool[pi]; pi += 1
                    if gr == 2 and q == 2: continue
                    o.extend(g.out_cvt(ob, op, r))
                    if gr == 2 and q != 3: continue
                    ad, sb, im = g.st_addr(q, r, sB)
                    i = GS(v(op, 2), ad, sO, s(sb), im + 128*gr, g.nts)
                    if gr < 2: i.nb = int(m0_ + g.st0 + g.ststep*si[0]); si[0] += 1
                    o.append(i)
        for ai in range(8):
            accb = vTACC + (24 if ai & 1 else 36)
            for st in range(6): umf(ai, st, accb)
            ucvt(ai, accb)
        m0_ = nm[0]
        pv(0, P0, m0_); pv(1, P1, m0_)
        ab = [vTACC+36, vTACC, vTACC+12, vTACC+24]
        for st in range(6):
            for k in range(4):
                umf(8+k, st, ab[k])
                if st == 5: ucvt(8+k, ab[k])
        for u in range(9):
            tr = g.transp_from(u, ("a", aRAW), dl_r=-60 + 4*u)
            tr[0].nb = tr[1].nb = g.tr_nb + (tot - 624)
            o += tr
        pv(2, P2, None)
        assert nm[0] == tot and kk[0] == len(seq)
        o += [SA("s_mov_b32", s(sBp[r]), s(sB[r]), scc_w=False) for r in range(4)]
        o += g.next_window()
        return o

    def tail_addr(g):
        o = []; A = o.append
        PR = vLA[:4]; PW = [vLA[4], vLA[5], vSW[0], vSW[1]]
        A(VA("v_lshrrev_b32", v(vTMP), 1, v(vWB[0])))
        A(SA("s_lshl_b32", s(sT[3]), s(sWAVE), 12))
        for t in range(4):
            if t < 3:
                A(SA("s_add_u32", s(sT[0]), s(sWAVE), t)); A(SA("s_sub_u32", s(sT[1]), s(sT[0]), 3))
                A(SCMP("s_cmp_ge_u32", s(sT[0]), 3)); A(SA("s_cselect_b32", s(sT[0]), s(sT[1]), s(sT[0]), scc_w=False, scc_r=True))
                A(SA("s_lshl_b32", s(sT[0]), s(sT[0]), 9)); A(SA("s_add_u32", s(sT[0]), s(sT[0]), WSB))
            else: A(SA("s_mov_b32", s(sT[0]), WSB + 1536, scc_w=False))
            A(VA("v_add_u32", v(PR[t]), s(sT[0]), v(vTMP)))
            A(VA("v_add_u32", v(PW[t]), s(sT[3]), v(PR[t])))
        return o, PR, PW
    def p_write(g, q, PW):
        return [I(f"ds_write_b64 v{PW[t]}, {rt('v', Sreg(q, 0) + (0, 2, 8, 10)[t], 2)}", "DW2", rd=[f"v{PW[t]}"] + regs("v", Sreg(q, 0) + (0, 2, 8, 10)[t], 2), wr=[f"Pw{t}"])
                for t in range(4)]
    def tail_main(g):
        o = g.deferred(); R = g.ring
        ad, PR, PW = g.tail_addr(); o += ad
        vWT = vSR[0]
        A = o.append
        A(SA("s_mul_i32", s(sT[0]), s(sWAVE), 24*1024, scc_w=False)); A(SA("s_add_u32", s(sT[0]), s(sT[0]), 72*1024))
        A(VA("v_add_u32", v(vWT), s(sT[0]), v(vWB[0])))
        A(SA("s_lshl_b32", s(sT[0]), s(sWAVE), 7)); A(SA("s_add_u32", s(sB[0]), s(sB[0]), s(sT[0])))
        o += [SA("s_add_u32", s(sB[r]), s(sB[0]), r*ROW) for r in range(1, 4)]
        for w, sm in ((1, 4), (2, 6)):
            A(SCMP("s_cmp_eq_u32", s(sWAVE), w)); A(SA("s_cselect_b64", s(sm, 2), -1, 0, scc_w=False, scc_r=True))
            for k in range(4): A(VA("v_cndmask_b32", v(vU + 8*k + 6), v(vU + 8*k + 6), v(vU + 8*(4*w+k) + 6), s(sm, 2)))
        kk = [0]
        def nxt():
            k = kk[0] + R; kk[0] += 1
            if k < 72: o.append(g.rdf(k, k))
            elif k < 96: o.append(DSR(g.slot(k), vWT, (k-72)*1024, []))
        for j in range(6):
            for st in range(6):
                for b in range(2):
                    d = v(vTACC + 32 + 8*(j & 1) + 4*b, 4)
                    A(MF(d, g.slot(kk[0]), X(0, st), d if st else None)); nxt()
            for b in range(2):
                for hh in range(2):
                    acc = vTACC + 32 + 8*(j & 1) + 4*b + 2*hh
                    A(VA("v_cvt_pk_bf16_f32", v(TPK(0, j)[1]+2*b+hh), v(acc), v(acc+1)))
        o += g.s_phase(0); o += g.softmax(0); o += g.p_write(0, PW)
        A(I("s_barrier", "B", rd=[f"Pw{t}" for t in range(4)], wr=["Prdy"]))
        for q in QORD():
            for t in range(4):
                d = Sreg(q, 0) + (0, 2, 8, 10)[t]
                A(I(f"ds_read_b64 {rt('v', d, 2)}, v{PR[t]} offset:{4096*q}", "DR", rd=[f"v{PR[t]}", "Prdy"], wr=regs("v", d, 2)))
        for k in range(4):
            accb = vTACC + (24 if k & 1 else 36)
            for st in range(6):
                for t in range(3):
                    d = v(accb + 4*t, 4)
                    A(MF(d, X(t, st), g.slot(kk[0]), d if st else None))
                nxt()
            for t in range(3):
                A(VA("v_cvt_pk_bf16_f32", v(vU + 8*k + 2*t), v(accb+4*t), v(accb+4*t+1)))
                A(VA("v_cvt_pk_bf16_f32", v(vU + 8*k + 2*t + 1), v(accb+4*t+2), v(accb+4*t+3)))
        pool = [vU + 32 + 2*i for i in range(14)]; pi = 0
        for qi, q in enumerate(QORD()):
            ob = vTACC + 16*(qi & 1)
            for ks in range(2):
                for k in range(4):
                    d = v(ob + 4*k, 4)
                    A(MF(d, v(Sreg(q, 2*ks), 4), v(vU + 8*k + 4*ks, 4), d if ks else None))
            for r in range(2 if q == 3 else 4):
                op = pool[pi]; pi += 1
                o += g.out_cvt(ob, op, r)
                ad_, sb, im = g.st_addr(q, r, sB)
                A(GS(v(op, 2), ad_, sO, s(sb), im, g.nts))
        return o
    def tail_L(g):
        o = g.deferred(paced=False)
        ad, PR, PW = g.tail_addr(); o += ad
        o += g.s_phase(3); o += g.softmax(3); o += g.p_write(3, PW)
        o.append(I("s_barrier", "B", rd=[f"Pw{t}" for t in range(4)], wr=["Prdy"]))
        return o

    def prologue(g):
        g.pro = "MX3"
        B = Gen2.prologue(g)
        return B

    def main_kernel(g):
        assert 144 % g.ring == 0
        B = g.prologue()
        B["b0"], _ = schedule(g.body(True), g.lds_lat, verbose=True, name="b0")
        body, _ = schedule(g.body(False), g.lds_lat, verbose=True, name="body")
        cmp_ = F(f"s_cmp_lt_u32 s{sN}, 4", rd=[f"s{sN}"])
        B["body"] = [F(".p2align 6"), F("L_loop:")] + body + [cmp_, F("s_cbranch_scc1 L_loop")]
        B["disp"] = [F(f"s_cmp_eq_u32 s{sN}, 4"), F("s_cbranch_scc1 L_rot"), F(f"s_cmp_ge_u32 s2, {NTAIL}"), F("s_cbranch_scc1 L_epi"),
                     F(f"s_cmp_eq_u32 s{sWAVE}, 3"), F("s_cbranch_scc1 L_tailL")]
        B["tail"], _ = schedule(g.tail_main(), g.lds_lat, verbose=True, name="tail")
        tl, _ = schedule(g.tail_L(), g.lds_lat, verbose=True, name="tailL")
        B["tailL"] = [F("L_tailL:")] + tl
        B["epi"] = [F("L_epi:")] + g.deferred(paced=False)
        rot = ["L_rot:", f"s_cmp_eq_u32 s{sWAVE}, 1", "s_cbranch_scc1 L_r1", f"s_cmp_eq_u32 s{sWAVE}, 2", "s_cbranch_scc0 L_loop"]
        for b in range(2): rot += [f"v_mov_b32 v{vTMP}, v{vLA[4+b]}", f"v_mov_b32 v{vLA[4+b]}, v{vLA[2+b]}", f"v_mov_b32 v{vLA[2+b]}, v{vLA[b]}", f"v_mov_b32 v{vLA[b]}, v{vTMP}"]
        rot += ["s_branch L_loop", "L_r1:"]
        for b in range(2): rot += [f"v_mov_b32 v{vTMP}, v{vLA[b]}", f"v_mov_b32 v{vLA[b]}, v{vLA[2+b]}", f"v_mov_b32 v{vLA[2+b]}, v{vLA[4+b]}", f"v_mov_b32 v{vLA[4+b]}, v{vTMP}"]
        rot += ["s_branch L_loop"]
        pre = ["p0", "p1", "b0", "body", "body", "body"]
        paths = [pre + ["disp", "tail"], pre + ["disp", "tailL"], pre + ["disp", "epi"]]
        B = insert_waits(B, paths)
        B, nn = fix_hazards(B, paths)
        T = {b: [c.txt for c in B[b]] for b in B}
        if g.diag:
            T["p0"].insert(2, f"s_memtime s[{SD}:{SD+1}]"); T["p0"].insert(3, "s_memrealtime s[76:77]")
            T["p1"].insert(T["p1"].index("s_barrier") + 1, f"s_memtime s[{SD+2}:{SD+3}]")
            T["p1"].append(f"s_memtime s[{SD+4}:{SD+5}]")
            for b, marks in (("b0", g.diag[0]), ("body", g.diag[1]), ("tail", g.diag[2])):
                nb = []; m = 0; k = 3
                for t in T[b]:
                    if t.startswith("v_mfma"):
                        if m in marks: nb.append(f"s_memtime s[{SD+2*k}:{SD+1+2*k}]"); k += 1
                        m += 1
                    if t == cmp_.txt and b == "body": nb += g.stamp_out(k)
                    nb.append(t)
                if b == "tail": nb.append(f"s_add_u32 s{sN}, s{sN}, 1")
                if b != "body": nb += g.stamp_out(k)
                assert k < 14
                T[b] = nb
        o = [f".globl {KN}", ".p2align 8", f".type {KN},@function", f"{KN}:"]
        for b in ["p0", "p1", "b0", "body", "disp", "tail"]: o += T[b]
        o += ["s_endpgm"] + T["tailL"] + ["s_endpgm"] + rot + T["epi"]
        o += ["L_end:", "s_endpgm"]
        return o

def build3(path, **kw):
    g = Gen3(**kw)
    hdr = open("standalone__swin_window_attn__vision.s.ref").read().split("\n")[:7]
    o = hdr + [f"; @launch kernel={PN} grid=(144,1,1) block=(64,1,1) lds=0",
               f"; @launch kernel={KN} grid=(256,1,1) block=(256,1,1) lds=163840",
               '.amdgcn_target "amdgcn-amd-amdhsa--gfx950"', ".text"]
    o += g.main_kernel() + prep_kernel2()
    o += ['.section .rodata,"a"'] + kd(KN, 512, 256, 96) + kd(PN, 136, 136, 40)
    open(path, "w").write("\n".join(o) + "\n")

if __name__ == "__main__":
    kw = eval("dict(" + (sys.argv[2] if len(sys.argv) > 2 else "") + ")")
    build3(sys.argv[1], **kw)
```

```python
import sys
from gen import *

sRB = 42; sRB2 = 43; sWn = 33
vX0 = vS
SD = 48

def GDm(tok):
    return I(f"buffer_load_dwordx4 v{vWB[0]}, s[{sWS}:{sWS+3}], m0 offen lds", "GD",
             rd=[f"v{vWB[0]}", "m0"] + regs("s", sWS, 4), wr=[tok])

class Gen2(Gen):
    def __init__(g, ring=12, ntl="nt", nts="", lds_lat=36, tr_nb=500, diag=None, ld0=0, ldstep=14, st0=8, ststep=7,
                 c1=6, wstep=8, tail=False, mlast=14, pro='I', lord='m', trip=1):
        g.pro = pro; g.trip = trip
        g.lo = list(range(18)) if lord == 'm' else [2*(3*m + (h >> 1)) + (h & 1) for h in range(6) for m in range(3)]
        Gen.__init__(g, ring, ntl, nts, lds_lat, tr_nb, diag)
        g.ld0 = ld0; g.ldstep = ldstep; g.st0 = st0; g.ststep = ststep; g.c1 = c1; g.wstep = wstep; g.tail = tail; g.mlast = mlast
        g.seq = list(range(72)) + [72 + ai*6 + st for ai in range(8) for st in range(6)] + \
                [72 + (8+k)*6 + st for st in range(6) for k in range(4)]
    def rd(g, k, first, dl=None):
        f = g.seq[k % 144]
        b, o = frag_lds(f)
        i = DSR(g.slot(k), b, o, ["Wrdy"] if (first and 72 <= k < 144) else [], dl=dl)
        return i
    def dma_piece(g, half, k):
        o = []
        src, kk = (sRB, k) if k < 16 else (sRB2, k - 16)
        if half == 0: o.append(SA("s_xor_b32", "m0", s(src), kk << 12))
        else:
            o.append(SA("s_xor_b32", s(sK), s(src), kk << 12)); o.append(SA("s_add_u32", "m0", s(sK), 73728))
        o.append(GDm(f"Wd{half}_{k}"))
        return o
    def transp_from(g, u, src, dl_r=None):
        m, t = divmod(u, 3)
        L = f"L{u & 1}"; off = (u & 1)*2048
        f, b = src
        o = [DSW(vSW[0], (f, b + 8*u, 4), off, [L+"a"]), DSW(vSW[1], (f, b + 8*u + 4, 4), off, [L+"b"])]
        for h in range(2):
            d = aFRAG + 4*(6*t+2*m+h)
            o.append(I(f"ds_read_b128 {rt('a', d, 4)}, v{vSR[h]} offset:{off}", "DR", rd=[f"v{vSR[h]}", L+"a", L+"b"], wr=regs("a", d, 4), dl=dl_r))
        return o
    def xload(g, k, sb, dst=("a", aRAW), srd=sXP):
        k = g.lo[k]
        u, b = divmod(k, 2); m, t = divmod(u, 3)
        return GL((dst[0], dst[1] + 4*k, 4), vLA[2*t+b], srd, s(sb), 128*m, g.ntl)

    def next_window(g):
        o = [SA("s_mov_b32", s(sB[0]), s(sBn), scc_w=False), SA("s_add_u32", s(sN), s(sN), 1), SA("s_mov_b32", s(sW), s(sWn), scc_w=False),
             SA("s_add_u32", s(sWn), s(sWn), 1024)]
        if g.tail:
            o += [SA("s_add_u32", s(sT[3]), s(2), 5120), SCMP("s_cmp_eq_u32", s(sN), 4), SA("s_cselect_b32", s(sWn), s(sT[3]), s(sWn), scc_w=False, scc_r=True)]
        o += g.winbase(sBn, sWn)
        o.append(SCMP("s_cmp_lt_u32", s(sWn), NWIN))
        o.append(SA("s_cselect_b32", s(sXP+2), XB, 0, scc_w=False, scc_r=True))
        o += g.masks()
        return o

    def body(g, first):
        o = []; R = g.ring
        nm = [0]
        def M(*x): nm[0] += 1; o.append(MF(*x))
        NT = 4 if first else 3
        tot = 624 + (144 if first else 0)
        o += [SA("s_add_u32", s(sB[r]), s(sB[0]), r*ROW) for r in range(1, 4)]
        if first:
            for k in range(18):
                p = g.dma_piece(1, k)
                for i in p: i.nb = g.wstep*k
                o += p
            for j, k in enumerate(range(g.c1, 18)):
                i = g.xload(k, sBn); i.nb = g.wstep//2 + g.wstep*(j - j % g.trip); o.append(i)
            bar = I("s_barrier", "B", rd=[f"Wd1_{k}" for k in range(18)], wr=["Wrdy"]); bar.nb = 4*(72-R) - 10
            o.append(bar)
        else:
            for k in range(18):
                i = g.xload(k, sBn); i.nb = g.ld0 + g.ldstep*(k - k % g.trip); o.append(i)
        def sph(q):
            for i in g.s_phase(q): o.append(i); nm[0] += 1
            o.extend(g.softmax(q))
        if not first: sph(3)
        kk = [0]
        def nxt():
            k = kk[0] + R
            o.append(g.rd(k, first, dl=(-40 + k - 144) if k >= 144 else None)); kk[0] += 1
        for j in range(6):
            def acc(b, t): return vTACC + 24*(j & 1) + 12*b + 4*t if t < 3 else vU + 8*(2*(j & 1) + b) + 4
            for st in range(6):
                for b in range(2):
                    for t in range(NT):
                        d = v(acc(b, t), 4)
                        M(d, g.slot(kk[0]), X(t, st), d if st else None)
                    nxt()
            for t in range(3):
                dst = TPK(t, j)[1]
                for b in range(2):
                    o.append(VA("v_cvt_pk_bf16_f32", v(dst+2*b), v(acc(b, t)), v(acc(b, t)+1)))
                    o.append(VA("v_cvt_pk_bf16_f32", v(dst+2*b+1), v(acc(b, t)+2), v(acc(b, t)+3)))
            if first:
                for b in range(2):
                    for hh in range(2):
                        tmp = vSPARE + 4*(j & 1) + 2*b + hh
                        o.append(VA("v_cvt_pk_bf16_f32", v(tmp), v(acc(b, 3)+2*hh), v(acc(b, 3)+2*hh+1)))
                        o.append(VA("v_accvgpr_write_b32", a(aTL + 4*j + 2*b + hh), v(tmp)))
        if first: sph(3)
        for q in range(3): sph(q)
        poolA = [vSPARE + 2*i for i in range(6)] + [vTPK + 2*i for i in range(4)] + [Sreg(3, 1), Sreg(3, 1)+2, Sreg(3, 3), Sreg(3, 3)+2]
        poolB = [Sreg(q, kt) + 2*h for q in range(3) for kt in (1, 3) for h in range(2)] + poolA[:2]
        def ucvt(ai, accb):
            if first: o.append(VA("v_cvt_pk_bf16_f32", v(vU + 8*ai + 6), v(vU + 8*ai + 4), v(vU + 8*ai + 5)))
            for t in range(3):
                o.append(VA("v_cvt_pk_bf16_f32", v(vU + 8*ai + 2*t), v(accb+4*t), v(accb+4*t+1)))
                o.append(VA("v_cvt_pk_bf16_f32", v(vU + 8*ai + 2*t + 1), v(accb+4*t+2), v(accb+4*t+3)))
        def umf(ai, st, accb):
            for t in range(NT):
                d = v(accb + 4*t, 4) if t < 3 else v(vU + 8*ai + 4, 4)
                M(d, X(t, st), g.slot(kk[0]), d if st else None)
            nxt()
        for gr in range(3):
            if gr < 2:
                for k in range(4):
                    accb = vTACC + (24 if k & 1 else 36)
                    for st in range(6): umf(4*gr+k, st, accb)
                    ucvt(4*gr+k, accb)
            else:
                ab = [vTACC+36, vTACC, vTACC+12, vTACC+24]
                for st in range(6):
                    for k in range(4):
                        umf(8+k, st, ab[k])
                        if st == 5: ucvt(8+k, ab[k])
                for u in range(9):
                    tr = g.transp_from(u, ("a", aRAW), dl_r=-60 + 4*u)
                    tr[0].nb = tr[1].nb = g.tr_nb + (tot - 624)
                    o += tr
            pool = poolB if gr == 1 else (poolA if gr == 0 else poolA[2:] + poolA[:2])
            pi = 0; m0_ = nm[0]
            for qi, q in enumerate(QORD()):
                ob = vTACC + 16*(qi & 1)
                for ks in range(2):
                    for k in range(4):
                        d = v(ob + 4*k, 4)
                        M(d, v(Sreg(q, 2*ks), 4), v(vU + 8*(4*gr+k) + 4*ks, 4), d if ks else None)
                for r in range(2 if q == 3 else 4):
                    op = pool[pi]
                    for k in range(2):
                        o.append(VA("v_cvt_pk_bf16_f32", v(op+k), v(ob + 8*k + r), v(ob + 8*k + 4 + r)))
                    if q == 3: ad, sb, im = vLS[r], sB[0], 0
                    elif q == 0: ad, sb, im = vSA[0], sB[0], 384*r
                    elif q == 1: ad, sb, im = vSA[1], sB[r], 0
                    else: ad, sb, im = vSA[2], sB[r >> 1], 384*(r & 1)
                    i = GS(v(op, 2), ad, sO, s(sb), im + 128*gr, g.nts)
                    if gr < 2: i.nb = m0_ + g.st0 + g.ststep*pi
                    o.append(i); pi += 1
        assert nm[0] == tot and kk[0] == 144
        o += g.next_window()
        return o

    def prologue(g):
        o = []; A = o.append
        A(F("s_cmp_ge_u32 s2, 256")); A(F("s_cbranch_scc1 L_end"))
        A(F("s_load_dwordx2 s[4:5], s[0:1], 0")); A(F("s_load_dwordx2 s[6:7], s[0:1], 24")); A(F("s_load_dwordx2 s[24:25], s[0:1], 40"))
        T = [vTACC+k for k in range(16)]
        A(VA("v_lshrrev_b32", v(T[0]), 6, v(0)))
        A(VA("v_and_b32", v(0), 63, v(0)))
        A(VA("v_readfirstlane_b32", s(sWAVE), v(T[0])))
        vi, vg = T[1], T[2]
        A(VA("v_and_b32", v(vi), 15, v(0))); A(VA("v_lshrrev_b32", v(vg), 4, v(0)))
        A(VA("v_lshlrev_b32", v(vWB[0]), 4, v(0)))
        A(SA("s_lshl_b32", s(sGW), s(2), 2)); A(SA("s_add_u32", s(sGW), s(sGW), s(sWAVE)))
        A(VA("v_lshrrev_b32", v(T[4]), 5, v(0)))
        A(VA("v_bfe_u32", v(T[5]), v(0), 3, 2))
        A(VA("v_and_b32", v(T[6]), 7, v(0))); A(VA("v_lshlrev_b32", v(T[6]), 4, v(T[6])))
        A(SA("s_mov_b32", s(sK), ROW, scc_w=False)); A(SA("s_movk_i32", s(sM0), 384, scc_w=False))
        def origin(dst, t, vsh):
            A(SA("s_mov_b32", s(sT[0]), lut(t), scc_w=False))
            A(VA("v_lshrrev_b32", v(T[8]), v(vsh), s(sT[0])))
            A(VA("v_bfe_u32", v(T[9]), v(T[8]), 3, 3)); A(VA("v_and_b32", v(T[8]), 7, v(T[8])))
            A(VA("v_mul_u32_u24", v(T[9]), ROW, v(T[9])))
            A(VA("v_mad_u32_u24", v(dst), v(T[8]), s(sM0), v(T[9])))
        A(VA("v_mad_u32_u24", v(T[10]), v(T[5]), s(sM0), v(T[6])))
        A(VA("v_mad_u32_u24", v(T[11]), v(T[5]), s(sK), v(T[6])))
        A(VA("v_lshrrev_b32", v(T[12]), 1, v(T[5]))); A(VA("v_mad_u32_u24", v(T[12]), v(T[12]), s(sK), v(T[6])))
        A(VA("v_and_b32", v(T[13]), 1, v(T[5]))); A(VA("v_mad_u32_u24", v(T[12]), v(T[13]), s(sM0), v(T[12])))
        for b in range(2):
            A(VA("v_lshlrev_b32", v(T[7]), 3, v(T[4])))
            if b: A(VA("v_add_u32", v(T[7]), 16, v(T[7])))
            for t in range(3):
                origin(vLA[2*t+b], t, T[7])
                A(VA("v_add_u32", v(vLA[2*t+b]), v(vLA[2*t+b]), v(T[10+t])))
        if getattr(g, "patA", 0):
            A(VA("v_and_b32", v(T[5]), 3, v(0))); A(VA("v_lshlrev_b32", v(T[6]), 4, v(vg)))
            A(VA("v_mad_u32_u24", v(T[10]), v(T[5]), s(sM0), v(T[6])))
            A(VA("v_mad_u32_u24", v(T[11]), v(T[5]), s(sK), v(T[6])))
            A(VA("v_lshrrev_b32", v(T[12]), 1, v(T[5]))); A(VA("v_mad_u32_u24", v(T[12]), v(T[12]), s(sK), v(T[6])))
            A(VA("v_and_b32", v(T[13]), 1, v(T[5]))); A(VA("v_mad_u32_u24", v(T[12]), v(T[13]), s(sM0), v(T[12])))
            A(VA("v_lshrrev_b32", v(T[7]), 2, v(vi))); A(VA("v_lshlrev_b32", v(T[7]), 3, v(T[7])))
            for t in range(3):
                origin(vLA[2*t], t, T[7])
                A(VA("v_add_u32", v(vLA[2*t]), v(vLA[2*t]), v(T[10+t])))
        A(SA("s_mov_b32", s(sW), s(sGW), scc_w=False)); A(SA("s_mov_b32", s(sN), 0, scc_w=False))
        o += g.winbase(sB[0], sW)
        A(SA("s_lshr_b32", s(sRB), s(2), 3)); A(SA("s_and_b32", s(sRB), s(sRB), 15)); A(SA("s_lshl_b32", s(sRB), s(sRB), 12))
        A(SA("s_lshl_b32", s(sT[0]), s(sWAVE), 10)); A(SA("s_add_u32", s(sRB), s(sRB), s(sT[0])))
        A(SA("s_and_b32", s(sRB2), s(sRB), "0x1fff")); A(SA("s_add_u32", s(sRB2), s(sRB2), "0x10000"))
        A(F("s_waitcnt lgkmcnt(0)", wr=["s4", "s5", "s6", "s7", "s24", "s25"]))
        def srd(srd, lo, sz):
            A(SA("s_mov_b32", s(srd), s(lo), scc_w=False)); A(SA("s_mov_b32", s(srd+1), s(lo+1), scc_w=False))
            A(SA("s_mov_b32", s(srd+2), sz, scc_w=False)); A(SA("s_mov_b32", s(srd+3), "0x20000", scc_w=False))
        srd(sXP, 4, XB); srd(sWS, 24, WSB)
        f = []; A = f.append
        A(VA("v_lshrrev_b32", v(T[4]), 2, v(vi))); A(VA("v_lshlrev_b32", v(T[4]), 1, v(T[4])))
        A(VA("v_and_b32", v(T[5]), 1, v(vi))); A(VA("v_add_u32", v(T[4]), v(T[4]), v(T[5])))
        if g.tail:
            A(SA("s_sub_u32", s(sT[1]), s(2), s(sGW)))
            A(VA("v_cmp_eq_u32", "vcc", 5, v(T[4]))); A(VA("v_mov_b32", v(T[5]), s(sT[1]))); A(VA("v_cndmask_b32", v(T[5]), 0, v(T[5]), "vcc"))
        A(VA("v_lshlrev_b32", v(T[4]), 10, v(T[4]))); A(VA("v_add_u32", v(T[4]), s(sGW), v(T[4])))
        if g.tail: A(VA("v_add_u32", v(T[4]), v(T[4]), v(T[5])))
        A(SA("s_mov_b32", s(sT[0]), 58835169, scc_w=False))
        A(VA("v_mul_hi_u32", v(T[5]), v(T[4]), s(sT[0])))
        A(VA("v_mul_u32_u24", v(T[6]), 73, v(T[5]))); A(VA("v_sub_u32", v(T[6]), v(T[4]), v(T[6])))
        A(VA("v_mul_u32_u24", v(T[5]), 7*ROW, v(T[5]))); A(VA("v_mul_u32_u24", v(T[6]), 7*384, v(T[6])))
        A(VA("v_add_u32", v(T[3]), v(T[5]), v(T[6])))
        A(VA("v_lshlrev_b32", v(T[5]), 4, v(vg))); A(VA("v_add_u32", v(T[3]), v(T[3]), v(T[5])))
        A(VA("v_add_u32", v(T[3]), CENTER, v(T[3])))
        A(VA("v_mov_b32", v(vOOB), "0x80000000")); A(VA("v_mov_b32", v(vNINF), "0xff800000"))
        A(VA("v_and_b32", v(T[5]), 2, v(vi))); A(VA("v_lshlrev_b32", v(T[5]), 14, v(T[5])))
        A(VA("v_add_u32", v(T[4]), v(T[4]), v(T[5])))
        A(VA("v_cmp_gt_u32", "vcc", NWIN, v(T[4])))
        A(VA("v_cndmask_b32", v(T[3]), v(vOOB), v(T[3]), "vcc"))
        for st in range(6): A(GL(a(aXL + 4*st, 4), T[3], sXP, 0, 64*st))
        f1 = f; f = []; A = f.append
        srd(sO, 6, XB)
        A(VA("v_lshlrev_b32", v(T[7]), 3, v(vg)))
        A(VA("v_lshlrev_b32", v(T[14]), 3, v(vi)))
        for t in range(3):
            origin(vSA[t], t, T[7])
            A(VA("v_add_u32", v(vSA[t]), v(vSA[t]), v(T[14])))
        A(VA("v_add_u32", v(vLSb), CENTER, v(T[14])))
        A(VA("v_lshlrev_b32", v(vG2), 1, v(vg)))
        A(VA("v_add_u32", v(vWB[1]), "0x10000", v(vWB[0]))); A(VA("v_add_u32", v(vWB[2]), "0x20000", v(vWB[0])))
        A(VA("v_mov_b32", v(vBIAS+2), 0)); A(VA("v_mov_b32", v(vBIAS+3), 0))
        A(SA("s_lshl_b32", s(sT[0]), s(sWAVE), 12)); A(SA("s_add_u32", s(sT[0]), s(sT[0]), WSB))
        A(VA("v_and_b32", v(T[8]), 7, v(0))); A(VA("v_xor_b32", v(T[8]), v(T[8]), v(vg))); A(VA("v_lshlrev_b32", v(T[8]), 4, v(T[8])))
        A(VA("v_lshrrev_b32", v(T[9]), 3, v(0))); A(VA("v_lshlrev_b32", v(T[9]), 7, v(T[9])))
        A(VA("v_add3_u32", v(vSW[0]), v(T[8]), v(T[9]), s(sT[0])))
        A(VA("v_xor_b32", v(vSW[1]), 64, v(vSW[0]))); A(VA("v_add_u32", v(vSW[1]), "0x400", v(vSW[1])))
        A(VA("v_lshrrev_b32", v(T[8]), 1, v(vi))); A(VA("v_xor_b32", v(T[8]), v(T[8]), v(vg))); A(VA("v_lshlrev_b32", v(T[8]), 4, v(T[8])))
        A(VA("v_lshlrev_b32", v(T[9]), 7, v(vi)))
        A(VA("v_add3_u32", v(vSR[0]), v(T[8]), v(T[9]), s(sT[0])))
        A(VA("v_xor_b32", v(vSR[1]), 64, v(vSR[0])))
        A(SA("s_add_u32", s(sWn), s(sW), 1024))
        f += g.winbase(sBn, sWn)
        f += g.masks()
        f2 = f
        def seq_I():
            o = []; mk = 0
            for k in range(18):
                o.append(g.xload(k, sB[0], dst=("v", vX0)))
                want = min(18, -(-(k+1)*18 // g.mlast))
                while mk < want: o += g.dma_piece(0, mk); mk += 1
                if k == 3: o += f1
                if k == 7: o += f2
            return o
        def seq_MX():
            o = []
            for k in range(18):
                o += g.dma_piece(0, k)
                if k == 3: o += f1
                if k == 7: o += f2
            for k in range(18): o.append(g.xload(k, sB[0], dst=("v", vX0)))
            return o
        def seq_XM():
            o = []
            for k in range(18):
                o.append(g.xload(k, sB[0], dst=("v", vX0)))
                if k == 3: o += f1
                if k == 7: o += f2
            for k in range(18): o += g.dma_piece(0, k)
            return o
        def p1(ub):
            o = []
            for u in range(10):
                if u == ub:
                    o.append(I("s_barrier", "B", rd=[f"Wd0_{k}" for k in range(18)]))
                    for k in range(g.ring): o.append(g.rd(k, True))
                if u < 9: o += g.transp_from(u, ("v", vX0))
            return o
        if g.pro == "MX3":
            f1a, f1b = f1[:-6], f1[-6:]
            xl = g.xlpos; n1 = g.n1
            for k in range(18): o += g.dma_piece(0, k)
            if g.bar1: o.append(I("s_barrier", "B"))
            for k in range(n1):
                o.append(g.xload(k, sB[0]))
                if k == 5: o += f1a + f2
                if xl == k + 1: o += f1b
            q = [I("s_barrier", "B", rd=[f"Wd0_{k}" for k in range(18)])] + [g.rd(k, True) for k in range(g.ring)]
            for k in range(n1, 18):
                q.append(g.xload(k, sB[0]))
                if xl == k + 1: q += f1b
            for m in range(3): q += g.transp_from(3*m, ("a", aRAW))
            return dict(p0=o, p1=q)
        x1 = [g.xload(k, sBn) for k in range(g.c1)]
        if g.pro == "I": return dict(p0=o + seq_I() + x1, p1=p1(min(9, (g.mlast + 1)//2)))
        if g.pro == "MX": return dict(p0=o + seq_MX() + x1, p1=p1(0))
        if g.pro == "XM": return dict(p0=o + seq_XM() + x1, p1=p1(9))
        o += [F(f"s_bitcmp1_b32 s2, {g.pro[2:] or 3}"), F("s_cbranch_scc1 L_xm")]
        return dict(p0=o, p1=seq_MX() + x1 + p1(0) + [F("s_branch L_b0")], p1b=[F("L_xm:")] + seq_XM() + x1 + p1(9) + [F("L_b0:")])

    def stamp_out(g, k):
        nb = [f"s_memtime s[{SD+2*k}:{SD+1+2*k}]", "s_memrealtime s[78:79]", "s_waitcnt lgkmcnt(0)"]
        for i in range(14): nb.append(f"v_writelane_b32 v{vTMP}, s{SD+2*i}, {i}")
        nb.append(f"v_writelane_b32 v{vTMP}, s76, 14"); nb.append(f"v_writelane_b32 v{vTMP}, s78, 15")
        nb += ["s_mov_b32 s80, s24", "s_mov_b32 s81, s25", "s_mov_b32 s82, 0x10000000", "s_mov_b32 s83, 0x20000",
               f"s_mul_i32 s84, s{sGW}, 6", f"s_add_u32 s84, s84, s{sN}", "s_sub_u32 s84, s84, 1", "s_lshl_b32 s84, s84, 8", "s_add_u32 s84, s84, 0x40000",
               "s_mov_b64 exec, 0xffff", f"buffer_store_dword v{vTMP}, v{vWB[0]}, s[80:83], s84 offen", "s_mov_b64 exec, -1"]
        return nb

    def main_kernel(g):
        assert 144 % g.ring == 0
        B = g.prologue()
        B["b0"], _ = schedule(g.body(True), g.lds_lat, verbose=True, name="b0")
        body, _ = schedule(g.body(False), g.lds_lat, verbose=True, name="body")
        cmp_ = F(f"s_cmp_lt_u32 s{sW}, {NWIN}", rd=[f"s{sW}"])
        B["body"] = [F(".p2align 6"), F("L_loop:")] + body + [cmp_, F("s_cbranch_scc1 L_loop")]
        order = ["p0", "p1", "b0", "body"]
        paths = [order + ["body", "body"]]
        if "p1b" in B:
            order = ["p0", "p1", "p1b", "b0", "body"]
            paths.append(["p0", "p1b", "b0", "body", "body", "body"])
        B = insert_waits(B, paths)
        B, nn = fix_hazards(B, paths)
        T = {b: [c.txt for c in B[b]] for b in B}
        if g.diag:
            T["p0"].insert(2, f"s_memtime s[{SD}:{SD+1}]"); T["p0"].insert(3, "s_memrealtime s[76:77]")
            T["p0"].append(f"s_memtime s[{SD+2}:{SD+3}]")
            T["p1b" if "p1b" in T else "p1"].append(f"s_memtime s[{SD+4}:{SD+5}]")
            for b, marks in (("b0", g.diag[0]), ("body", g.diag[1])):
                nb = []; m = 0; k = 3
                for t in T[b]:
                    if t.startswith("v_mfma"):
                        if m in marks: nb.append(f"s_memtime s[{SD+2*k}:{SD+1+2*k}]"); k += 1
                        m += 1
                    if t == cmp_.txt and b == "body": nb += g.stamp_out(k)
                    nb.append(t)
                if b == "b0": nb += g.stamp_out(k)
                assert k < 14
                T[b] = nb
        o = [f".globl {KN}", ".p2align 8", f".type {KN},@function", f"{KN}:"]
        for b in order: o += T[b]
        o += ["L_end:", "s_endpgm"]
        return o

def prep_kernel2():
    o = prep_kernel()
    i0 = o.index("s_cmp_ge_u32 s28, 6")
    assert o[i0+1:i0+5] == ["s_cselect_b32 s32, 90, 0", "s_add_u32 s32, s32, s28", "s_lshl_b32 s32, s32, 1", "v_mul_u32_u24 v6, 12, v1"]
    o[i0:i0+5] = ["s_lshr_b32 s32, s28, 2", "s_lshl_b32 s32, s32, 6", "s_and_b32 s33, s28, 3", "s_add_u32 s32, s32, s33", "s_lshl_b32 s32, s32, 1",
                  "v_lshlrev_b32 v6, 3, v1"]
    return o

def build2(path, **kw):
    g = Gen2(**kw)
    hdr = open("standalone__swin_window_attn__vision.s.ref").read().split("\n")[:7]
    o = hdr + [f"; @launch kernel={PN} grid=(144,1,1) block=(64,1,1) lds=0",
               f"; @launch kernel={KN} grid=(256,1,1) block=(256,1,1) lds=163840",
               '.amdgcn_target "amdgcn-amd-amdhsa--gfx950"', ".text"]
    o += g.main_kernel() + prep_kernel2()
    o += ['.section .rodata,"a"'] + kd(KN, 512, 256, 96) + kd(PN, 136, 136, 40)
    open(path, "w").write("\n".join(o) + "\n")

if __name__ == "__main__":
    kw = eval("dict(" + (sys.argv[2] if len(sys.argv) > 2 else "") + ")")
    build2(sys.argv[1], **kw)
```

```python
import sys
from gen2 import *

sBp = [44, 45, 46, 47]
sPC = 88
P0 = [Sreg(q, kt) + 2*h for q in range(2) for kt in (1, 3) for h in range(2)] + [vSPARE + 2*i for i in range(6)]
P1 = [vTPK + 2*i for i in range(4)] + [Sreg(q, kt) + 2*h for q in (3, 2) for kt in (1, 3) for h in range(2)] + P0[:2]
P2 = P1[:2] + P0[2:]
NTAIL = NWIN - 5120

class Gen3(Gen2):
    def __init__(g, ds0=0, dstep=5, ld0=60, ldstep=14, st0=8, ststep=5.5, wstep=12, x10=216, x1step=8, tA=24, wbar=350, tr_nb=470, c1=0, xlpos=18, aord=1, n1=12, bar1=1, patA=0, warm=0, warm2=0, warmp=0, w2nb=40, **kw):
        g.patA = patA; g.warm = warm; g.warm2 = warm2; g.warmp = warmp; g.w2nb = w2nb
        g.xlpos = xlpos; g.aord = aord; g.n1 = n1; g.bar1 = bar1
        Gen2.__init__(g, ld0=ld0, ldstep=ldstep, st0=st0, ststep=ststep, wstep=wstep, lord='h', tail=True, tr_nb=tr_nb, c1=c1, **kw)
        g.ds0 = ds0; g.dstep = dstep; g.x10 = x10; g.x1step = x1step; g.tA = tA; g.wbar = wbar
    def xload(g, k, sb, dst=("a", aRAW), srd=sXP):
        if not g.patA: return Gen2.xload(g, k, sb, dst, srd)
        t, st = divmod(k, 6)
        kk = g.lo[k]
        return GL((dst[0], dst[1] + 4*kk, 4), vLA[2*t], srd, s(sb), 64*st, g.ntl)
    def rdf(g, k, f, toks=(), dl=None):
        b, o = frag_lds(f)
        return DSR(g.slot(k), b, o, list(toks), dl=dl)
    def st_addr(g, q, r, B):
        if q == 3: return vLS[r], B[0], 0
        if q == 0: return vSA[0], B[0], 384*r
        if q == 1: return vSA[1], B[r], 0
        return vSA[2], B[r >> 1], 384*(r & 1)
    def out_cvt(g, ob, op, r):
        return [VA("v_cvt_pk_bf16_f32", v(op+k), v(ob + 8*k + r), v(ob + 8*k + 4 + r)) for k in range(2)]
    def deferred(g, paced=True):
        o = []
        for r in range(4): o += g.out_cvt(vTACC + 16, P2[10+r], r)
        for i in range(12):
            q, r = divmod(i, 4)
            ad, sb, im = g.st_addr(q, r, sBp)
            x = GS(v(P2[2+i], 2), ad, sO, s(sb), im + 256, g.nts)
            if paced: x.nb = g.ds0 + g.dstep*i
            o.append(x)
        return o

    def body(g, first):
        o = []; R = g.ring
        nm = [0]
        def M(*x): nm[0] += 1; o.append(MF(*x))
        NT = 4 if first else 3
        tot = 624 + (144 if first else 0)
        seq = (list(range(72))*3 if first else list(range(72))) + g.seq[72:]
        nW = len(seq) - 72
        kk = [0]
        def nxt():
            k = kk[0] + R; kk[0] += 1
            if k >= len(seq): o.append(g.rdf(k, k - len(seq), dl=-40 + k - len(seq)))
            else: o.append(g.rdf(k, seq[k], ["Wrdy"] if (first and k >= nW) else []))
        def sph(q):
            for i in g.s_phase(q): o.append(i); nm[0] += 1
            o.extend(g.softmax(q))
        def tphase(tiles):
            n = len(tiles)
            for j in range(6):
                def acc(b, x): return vTACC + 8*n*(j & 1) + 4*n*b + 4*x
                for st in range(6):
                    for b in range(2):
                        for x, t in enumerate(tiles):
                            d = v(acc(b, x), 4)
                            M(d, g.slot(kk[0]), X(t, st), d if st else None)
                        nxt()
                for x, t in enumerate(tiles):
                    for b in range(2):
                        for hh in range(2):
                            if t < 3:
                                o.append(VA("v_cvt_pk_bf16_f32", v(TPK(t, j)[1]+2*b+hh), v(acc(b, x)+2*hh), v(acc(b, x)+2*hh+1)))
                            else:
                                tmp = vSPARE + 4*(j & 1) + 2*b + hh
                                o.append(VA("v_cvt_pk_bf16_f32", v(tmp), v(acc(b, x)+2*hh), v(acc(b, x)+2*hh+1)))
                                o.append(VA("v_accvgpr_write_b32", a(aTL + 4*j + 2*b + hh), v(tmp)))
        if not first: o += g.deferred()
        o += [SA("s_add_u32", s(sB[r]), s(sB[0]), r*ROW) for r in range(1, 4)]
        if first:
            for k in range(18):
                p = g.dma_piece(1, k)
                for i in p[:-1]: i.nb = g.wstep*k - 4
                p[-1].nb = g.wstep*k
                o += p
            bar = I("s_barrier", "B", rd=[f"Wd1_{k}" for k in range(18)], wr=["Wrdy"]); bar.nb = g.wbar
            o.append(bar)
            ph = [[3, 0], [1], [2]] if g.aord == 0 else [[0], [1], [2, 3]]
            for tl in ph:
                for t in tl:
                    if t in (1, 2):
                        for m in range(3):
                            tr = g.transp_from(3*m + t, ("a", aRAW))
                            tr[0].nb = tr[1].nb = nm[0] - g.tA
                            o += tr
                tphase(tl)
            for k in range(18):
                i = g.xload(k, sBn); i.nb = g.x10 + g.x1step*(k - k % g.trip); o.append(i)
            sph(3)
        else:
            for k in range(18):
                i = g.xload(k, sBn); i.nb = g.ld0 + g.ldstep*(k - k % g.trip); o.append(i)
            if g.warm2:
                i = I(f"s_load_dword s{sPC+6}, s[{sPC}:{sPC+1}], 0", "S"); i.nb = g.w2nb; i.dl = -10**6; o.append(i)
            sph(3)
            tphase([0, 1, 2])
        for q in range(3): sph(q)
        def ucvt(ai, accb):
            if first: o.append(VA("v_cvt_pk_bf16_f32", v(vU + 8*ai + 6), v(vU + 8*ai + 4), v(vU + 8*ai + 5)))
            for t in range(3):
                o.append(VA("v_cvt_pk_bf16_f32", v(vU + 8*ai + 2*t), v(accb+4*t), v(accb+4*t+1)))
                o.append(VA("v_cvt_pk_bf16_f32", v(vU + 8*ai + 2*t + 1), v(accb+4*t+2), v(accb+4*t+3)))
        def umf(ai, st, accb):
            for t in range(NT):
                d = v(accb + 4*t, 4) if t < 3 else v(vU + 8*ai + 4, 4)
                M(d, X(t, st), g.slot(kk[0]), d if st else None)
            nxt()
        si = [0]
        def pv(gr, pool, m0_):
            pi = 0
            for qi, q in enumerate(QORD()):
                ob = vTACC + 16*(qi & 1)
                for ks in range(2):
                    for k in range(4):
                        d = v(ob + 4*k, 4)
                        M(d, v(Sreg(q, 2*ks), 4), v(vU + 8*(4*gr+k) + 4*ks, 4), d if ks else None)
                for r in range(2 if q == 3 else 4):
                    op = pool[pi]; pi += 1
                    if gr == 2 and q == 2: continue
                    o.extend(g.out_cvt(ob, op, r))
                    if gr == 2 and q != 3: continue
                    ad, sb, im = g.st_addr(q, r, sB)
                    i = GS(v(op, 2), ad, sO, s(sb), im + 128*gr, g.nts)
                    if gr < 2: i.nb = int(m0_ + g.st0 + g.ststep*si[0]); si[0] += 1
                    o.append(i)
        for ai in range(8):
            accb = vTACC + (24 if ai & 1 else 36)
            for st in range(6): umf(ai, st, accb)
            ucvt(ai, accb)
        m0_ = nm[0]
        pv(0, P0, m0_); pv(1, P1, m0_)
        ab = [vTACC+36, vTACC, vTACC+12, vTACC+24]
        for st in range(6):
            for k in range(4):
                umf(8+k, st, ab[k])
                if st == 5: ucvt(8+k, ab[k])
        for u in range(9):
            tr = g.transp_from(u, ("a", aRAW), dl_r=-60 + 4*u)
            tr[0].nb = tr[1].nb = g.tr_nb + (tot - 624)
            o += tr
        pv(2, P2, None)
        assert nm[0] == tot and kk[0] == len(seq)
        o += [SA("s_mov_b32", s(sBp[r]), s(sB[r]), scc_w=False) for r in range(4)]
        o += g.next_window()
        return o

    def tail_addr(g):
        o = []; A = o.append
        PR = vLA[:4]; PW = [vLA[4], vLA[5], vSW[0], vSW[1]]
        A(VA("v_lshrrev_b32", v(vTMP), 1, v(vWB[0])))
        A(SA("s_lshl_b32", s(sT[3]), s(sWAVE), 12))
        for t in range(4):
            if t < 3:
                A(SA("s_add_u32", s(sT[0]), s(sWAVE), t)); A(SA("s_sub_u32", s(sT[1]), s(sT[0]), 3))
                A(SCMP("s_cmp_ge_u32", s(sT[0]), 3)); A(SA("s_cselect_b32", s(sT[0]), s(sT[1]), s(sT[0]), scc_w=False, scc_r=True))
                A(SA("s_lshl_b32", s(sT[0]), s(sT[0]), 9)); A(SA("s_add_u32", s(sT[0]), s(sT[0]), WSB))
            else: A(SA("s_mov_b32", s(sT[0]), WSB + 1536, scc_w=False))
            A(VA("v_add_u32", v(PR[t]), s(sT[0]), v(vTMP)))
            A(VA("v_add_u32", v(PW[t]), s(sT[3]), v(PR[t])))
        return o, PR, PW
    def p_write(g, q, PW):
        return [I(f"ds_write_b64 v{PW[t]}, {rt('v', Sreg(q, 0) + (0, 2, 8, 10)[t], 2)}", "DW2", rd=[f"v{PW[t]}"] + regs("v", Sreg(q, 0) + (0, 2, 8, 10)[t], 2), wr=[f"Pw{t}"])
                for t in range(4)]
    def tail_main(g):
        o = g.deferred(); R = g.ring
        ad, PR, PW = g.tail_addr(); o += ad
        vWT = vSR[0]
        A = o.append
        A(SA("s_mul_i32", s(sT[0]), s(sWAVE), 24*1024, scc_w=False)); A(SA("s_add_u32", s(sT[0]), s(sT[0]), 72*1024))
        A(VA("v_add_u32", v(vWT), s(sT[0]), v(vWB[0])))
        A(SA("s_lshl_b32", s(sT[0]), s(sWAVE), 7)); A(SA("s_add_u32", s(sB[0]), s(sB[0]), s(sT[0])))
        o += [SA("s_add_u32", s(sB[r]), s(sB[0]), r*ROW) for r in range(1, 4)]
        for w, sm in ((1, 4), (2, 6)):
            A(SCMP("s_cmp_eq_u32", s(sWAVE), w)); A(SA("s_cselect_b64", s(sm, 2), -1, 0, scc_w=False, scc_r=True))
            for k in range(4): A(VA("v_cndmask_b32", v(vU + 8*k + 6), v(vU + 8*k + 6), v(vU + 8*(4*w+k) + 6), s(sm, 2)))
        kk = [0]
        def nxt():
            k = kk[0] + R; kk[0] += 1
            if k < 72: o.append(g.rdf(k, k))
            elif k < 96: o.append(DSR(g.slot(k), vWT, (k-72)*1024, []))
        for j in range(6):
            for st in range(6):
                for b in range(2):
                    d = v(vTACC + 32 + 8*(j & 1) + 4*b, 4)
                    A(MF(d, g.slot(kk[0]), X(0, st), d if st else None)); nxt()
            for b in range(2):
                for hh in range(2):
                    acc = vTACC + 32 + 8*(j & 1) + 4*b + 2*hh
                    A(VA("v_cvt_pk_bf16_f32", v(TPK(0, j)[1]+2*b+hh), v(acc), v(acc+1)))
        o += g.s_phase(0); o += g.softmax(0); o += g.p_write(0, PW)
        A(I("s_barrier", "B", rd=[f"Pw{t}" for t in range(4)], wr=["Prdy"]))
        for q in QORD():
            for t in range(4):
                d = Sreg(q, 0) + (0, 2, 8, 10)[t]
                A(I(f"ds_read_b64 {rt('v', d, 2)}, v{PR[t]} offset:{4096*q}", "DR", rd=[f"v{PR[t]}", "Prdy"], wr=regs("v", d, 2)))
        for k in range(4):
            accb = vTACC + (24 if k & 1 else 36)
            for st in range(6):
                for t in range(3):
                    d = v(accb + 4*t, 4)
                    A(MF(d, X(t, st), g.slot(kk[0]), d if st else None))
                nxt()
            for t in range(3):
                A(VA("v_cvt_pk_bf16_f32", v(vU + 8*k + 2*t), v(accb+4*t), v(accb+4*t+1)))
                A(VA("v_cvt_pk_bf16_f32", v(vU + 8*k + 2*t + 1), v(accb+4*t+2), v(accb+4*t+3)))
        pool = [vU + 32 + 2*i for i in range(14)]; pi = 0
        for qi, q in enumerate(QORD()):
            ob = vTACC + 16*(qi & 1)
            for ks in range(2):
                for k in range(4):
                    d = v(ob + 4*k, 4)
                    A(MF(d, v(Sreg(q, 2*ks), 4), v(vU + 8*k + 4*ks, 4), d if ks else None))
            for r in range(2 if q == 3 else 4):
                op = pool[pi]; pi += 1
                o += g.out_cvt(ob, op, r)
                ad_, sb, im = g.st_addr(q, r, sB)
                A(GS(v(op, 2), ad_, sO, s(sb), im, g.nts))
        return o
    def tail_L(g):
        o = g.deferred(paced=False)
        ad, PR, PW = g.tail_addr(); o += ad
        o += g.s_phase(3); o += g.softmax(3); o += g.p_write(3, PW)
        o.append(I("s_barrier", "B", rd=[f"Pw{t}" for t in range(4)], wr=["Prdy"]))
        return o

    def prologue(g):
        g.pro = "MX3"
        B = Gen2.prologue(g)
        if g.warm or g.warm2:
            p = B["p0"]
            i0 = [k for k, c in enumerate(p) if c.txt.startswith("s_waitcnt lgkmcnt(0)")][0] + 1
            w = [F(f"s_getpc_b64 s[{sPC}:{sPC+1}]"), F(f"s_and_b32 s{sPC}, s{sPC}, 0xffffff00"),
                 F(f"s_lshr_b32 s{sPC+2}, s2, 3"), F(f"s_lshl_b32 s{sPC+2}, s{sPC+2}, 2"), F(f"s_add_u32 s{sPC+2}, s{sPC+2}, s{sWAVE}")]
            pre = w
            w = []
            if g.warm:
                w += [F(f"s_mul_i32 s{sPC+3}, s{sPC+2}, {64*g.warm}"), F(f"s_min_u32 s{sPC+3}, s{sPC+3}, L_end-{KN}-{64*g.warm}+64"),
                      F(f"s_add_u32 s{sPC+4}, s{sPC}, s{sPC+3}"), F(f"s_addc_u32 s{sPC+5}, s{sPC+1}, 0")]
                w += [F(f"s_load_dword s{sPC+6}, s[{sPC+4}:{sPC+5}], {64*k}") for k in range(g.warm)]
            if g.warm2:
                w += [F(f"s_lshl_b32 s{sPC+3}, s{sPC+2}, 6"), F(f"s_min_u32 s{sPC+3}, s{sPC+3}, L_end-L_disp"),
                      F(f"s_add_u32 s{sPC+3}, s{sPC+3}, L_disp-{KN}"),
                      F(f"s_add_u32 s{sPC}, s{sPC}, s{sPC+3}"), F(f"s_addc_u32 s{sPC+1}, s{sPC+1}, 0")]
            p[2:2] = pre[:2]
            i0 += 2
            i1 = max(k for k, c in enumerate(p) if c.k == "GD") + 1
            p[i1:i1] = pre[2:] + w
        return B

    def main_kernel(g):
        assert 144 % g.ring == 0
        B = g.prologue()
        B["b0"], _ = schedule(g.body(True), g.lds_lat, verbose=True, name="b0")
        body, _ = schedule(g.body(False), g.lds_lat, verbose=True, name="body")
        cmp_ = F(f"s_cmp_lt_u32 s{sN}, 4", rd=[f"s{sN}"])
        B["body"] = [F(".p2align 6"), F("L_loop:")] + body + [cmp_, F("s_cbranch_scc1 L_loop")]
        B["disp"] = [F("L_disp:"), F(f"s_cmp_eq_u32 s{sN}, 4"), F("s_cbranch_scc1 L_rot"), F(f"s_cmp_ge_u32 s2, {NTAIL}"), F("s_cbranch_scc1 L_epi"),
                     F(f"s_cmp_eq_u32 s{sWAVE}, 3"), F("s_cbranch_scc1 L_tailL")]
        B["tail"], _ = schedule(g.tail_main(), g.lds_lat, verbose=True, name="tail")
        tl, _ = schedule(g.tail_L(), g.lds_lat, verbose=True, name="tailL")
        B["tailL"] = [F("L_tailL:")] + tl
        B["epi"] = [F("L_epi:")] + g.deferred(paced=False)
        rot = ["L_rot:", f"s_cmp_eq_u32 s{sWAVE}, 1", "s_cbranch_scc1 L_r1", f"s_cmp_eq_u32 s{sWAVE}, 2", "s_cbranch_scc0 L_loop"]
        for b in range(2): rot += [f"v_mov_b32 v{vTMP}, v{vLA[4+b]}", f"v_mov_b32 v{vLA[4+b]}, v{vLA[2+b]}", f"v_mov_b32 v{vLA[2+b]}, v{vLA[b]}", f"v_mov_b32 v{vLA[b]}, v{vTMP}"]
        rot += ["s_branch L_loop", "L_r1:"]
        for b in range(2): rot += [f"v_mov_b32 v{vTMP}, v{vLA[b]}", f"v_mov_b32 v{vLA[b]}, v{vLA[2+b]}", f"v_mov_b32 v{vLA[2+b]}, v{vLA[4+b]}", f"v_mov_b32 v{vLA[4+b]}, v{vTMP}"]
        rot += ["s_branch L_loop"]
        pre = ["p0", "p1", "b0", "body", "body", "body"]
        paths = [pre + ["disp", "tail"], pre + ["disp", "tailL"], pre + ["disp", "epi"]]
        B = insert_waits(B, paths)
        B, nn = fix_hazards(B, paths)
        T = {b: [c.txt for c in B[b]] for b in B}
        if g.diag:
            T["p0"].insert(2, f"s_memtime s[{SD}:{SD+1}]"); T["p0"].insert(3, "s_memrealtime s[76:77]")
            T["p1"].insert(T["p1"].index("s_barrier") + 1, f"s_memtime s[{SD+2}:{SD+3}]")
            T["p1"].append(f"s_memtime s[{SD+4}:{SD+5}]")
            for b, marks in (("b0", g.diag[0]), ("body", g.diag[1]), ("tail", g.diag[2])):
                nb = []; m = 0; k = 3
                for t in T[b]:
                    if t.startswith("v_mfma"):
                        if m in marks: nb.append(f"s_memtime s[{SD+2*k}:{SD+1+2*k}]"); k += 1
                        m += 1
                    if t == cmp_.txt and b == "body": nb += g.stamp_out(k)
                    nb.append(t)
                if b == "tail": nb.append(f"s_add_u32 s{sN}, s{sN}, 1")
                if b != "body": nb += g.stamp_out(k)
                assert k < 14
                T[b] = nb
        o = [f".globl {KN}", ".p2align 8", f".type {KN},@function", f"{KN}:"]
        for b in ["p0", "p1", "b0", "body", "disp", "tail"]: o += T[b]
        o += ["s_endpgm"] + T["tailL"] + ["s_endpgm"] + rot + T["epi"]
        o += ["L_end:", "s_endpgm"]
        return o

def build3(path, **kw):
    g = Gen3(**kw)
    hdr = open("standalone__swin_window_attn__vision.s.ref").read().split("\n")[:7]
    o = hdr + [f"; @launch kernel={PN} grid=(144,1,1) block=(64,1,1) lds=0",
               f"; @launch kernel={KN} grid=(256,1,1) block=(256,1,1) lds=163840",
               '.amdgcn_target "amdgcn-amd-amdhsa--gfx950"', ".text"]
    pk = prep_kernel2()
    if g.warmp:
        i0 = pk.index("s_cbranch_scc1 LP_end") + 1
        pk[i0:i0] = ["s_getpc_b64 s[34:35]", "LP_pc:", f"s_sub_u32 s34, s34, LP_pc-{KN}", "s_subb_u32 s35, s35, 0",
                     "s_lshr_b32 s36, s2, 3", "s_lshl_b32 s36, s36, 12", "v_lshlrev_b32 v120, 6, v0", "v_add_u32 v120, s36, v120",
                     f"v_min_u32 v120, L_end-{KN}, v120", "global_load_dword v121, v120, s[34:35]"]
    o += g.main_kernel() + pk
    o += ['.section .rodata,"a"'] + kd(KN, 512, 256, 100) + kd(PN, 136, 136, 40)
    open(path, "w").write("\n".join(o) + "\n")

if __name__ == "__main__":
    kw = eval("dict(" + (sys.argv[2] if len(sys.argv) > 2 else "") + ")")
    build3(sys.argv[1], **kw)
```

```python
import sys
src, dst, Q, K = sys.argv[1], sys.argv[2], sys.argv[3], int(sys.argv[4])
L = open(src).read().split("\n")
out = []
for i, l in enumerate(L):
    out.append(l)
    if l.startswith("; @launch kernel=standalone"): out.append("; @launch kernel=swin_probe_kernel grid=(1,1,1) block=(64,1,1) lds=0")
    if l == "s_cbranch_scc1 LP_end": out.append("s_memrealtime s[38:39]")
    if l == "s_lshl_b32 s26, s2, 10":
        out += ["s_cmp_lg_u32 s2, 0", "s_cbranch_scc1 LP_ns", "s_mov_b32 s20, s24", "s_mov_b32 s21, s25", "s_mov_b32 s22, 0x100000", "s_mov_b32 s23, 0x20000",
                "v_mov_b32 v130, s38", "v_mov_b32 v131, 0x3f000", "buffer_store_dword v130, v131, s[20:23], 0 offen", "LP_ns:"]
i0 = out.index('.section .rodata,"a"')
P = [".globl swin_probe_kernel", ".p2align 8", ".type swin_probe_kernel,@function", "swin_probe_kernel:",
     "s_cmp_ge_u32 s2, 1", "s_cbranch_scc1 LQ_end", "s_load_dwordx2 s[4:5], s[0:1], 40", "s_waitcnt lgkmcnt(0)",
     "s_mov_b32 s8, s4", "s_mov_b32 s9, s5", "s_mov_b32 s10, 0x10000000", "s_mov_b32 s11, 0x20000",
     "v_mul_u32_u24 v1, 1536, v0", "v_add_u32 v1, 0x40000, v1",
     "v_mov_b32 v2, -1", "v_mov_b32 v3, 0", "v_mov_b32 v4, 0", "v_mov_b32 v5, 0", "v_mov_b32 v20, 0x3f000",
     "buffer_load_dword v21, v20, s[8:11], 0 offen",
     "buffer_load_dword v22, v1, s[8:11], 0 offen offset:224", "s_waitcnt vmcnt(0)", "v_readfirstlane_b32 s30, v22", "s_sub_u32 s30, s30, 100000",
     "v_and_b32 v6, 3, v0", "s_mov_b32 s12, 0", "s_mov_b32 s13, 0",
     "LQ_loop:",
     "buffer_load_dword v10, v1, s[8:11], s12 offen offset:224",
     "buffer_load_dword v11, v1, s[8:11], s12 offen offset:240",
     f"buffer_load_dword v12, v1, s[8:11], s12 offen offset:{4*256+240}",
     f"buffer_load_dword v13, v1, s[8:11], s12 offen offset:{5*256+240}",
     "s_waitcnt vmcnt(0)",
     "v_subrev_u32 v10, s30, v10", "v_subrev_u32 v11, s30, v11", "v_subrev_u32 v12, s30, v12", "v_subrev_u32 v13, s30, v13",
     "v_add_u32 v7, s13, v0", "v_cmp_gt_u32 vcc, 836, v7", "v_cndmask_b32 v13, 0, v13, vcc", "v_cmp_gt_u32 vcc, 3, v6", "v_cndmask_b32 v13, 0, v13, vcc",
     "v_min_u32 v2, v2, v10", "v_max_u32 v3, v3, v12", "v_max_u32 v3, v3, v13", "v_add_u32 v4, v4, v11", "v_add_u32 v5, v5, v12",
     f"s_add_u32 s12, s12, {64*1536}", "s_add_u32 s13, s13, 64", "s_cmp_lt_u32 s13, 1024", "s_cbranch_scc1 LQ_loop",
     "s_mov_b32 s14, -1", "s_mov_b32 s15, 0", "s_mov_b32 s16, 0", "s_mov_b32 s17, 0", "s_mov_b32 s18, 0",
     "LQ_red:",
     "s_nop 4", "v_readlane_b32 s20, v2, s18", "v_readlane_b32 s21, v3, s18", "v_readlane_b32 s22, v4, s18", "v_readlane_b32 s23, v5, s18", "s_nop 4",
     "s_min_u32 s14, s14, s20", "s_max_u32 s15, s15, s21", "s_add_u32 s16, s16, s22", "s_add_u32 s17, s17, s23",
     "s_add_u32 s18, s18, 1", "s_cmp_lt_u32 s18, 64", "s_cbranch_scc1 LQ_red",
     "s_lshr_b32 s16, s16, 10", "s_lshr_b32 s17, s17, 10", "v_readfirstlane_b32 s24, v21", "s_nop 4", "s_sub_u32 s24, s24, s30"]
P += {"zero": ["s_mov_b32 s25, 0"], "span": ["s_sub_u32 s25, s15, s14"], "gap": ["s_sub_u32 s25, s14, s24"],
      "b0": ["s_sub_u32 s25, s16, s14"], "n4": ["s_sub_u32 s25, s17, s14"],
      "post": ["s_memrealtime s[26:27]", "s_waitcnt lgkmcnt(0)", "s_sub_u32 s26, s26, s30", "s_sub_u32 s25, s26, s15"]}[Q]
P += ["s_min_u32 s25, s25, 20000", f"s_mul_i32 s25, s25, {K}",
      "s_memrealtime s[26:27]", "s_waitcnt lgkmcnt(0)",
      "LQ_spin:", "s_memrealtime s[28:29]", "s_waitcnt lgkmcnt(0)", "s_sub_u32 s28, s28, s26", "s_cmp_lt_u32 s28, s25", "s_cbranch_scc1 LQ_spin",
      "LQ_end:", "s_endpgm"]
out[i0:i0] = P
out += [".p2align 6", ".amdhsa_kernel swin_probe_kernel", "  .amdhsa_next_free_vgpr 32", "  .amdhsa_next_free_sgpr 40",
        "  .amdhsa_accum_offset 32", "  .amdhsa_group_segment_fixed_size 0", "  .amdhsa_kernarg_size 48",
        "  .amdhsa_user_sgpr_count 2", "  .amdhsa_user_sgpr_kernarg_segment_ptr 1",
        "  .amdhsa_system_sgpr_workgroup_id_x 1", ".end_amdhsa_kernel", ""]
open(dst, "w").write("\n".join(out))
```

```python
import sys
from gen2 import *

sBp = [44, 45, 46, 47]
sPC = 88
P0 = [Sreg(q, kt) + 2*h for q in range(2) for kt in (1, 3) for h in range(2)] + [vSPARE + 2*i for i in range(6)]
P1 = [vTPK + 2*i for i in range(4)] + [Sreg(q, kt) + 2*h for q in (3, 2) for kt in (1, 3) for h in range(2)] + P0[:2]
P2 = P1[:2] + P0[2:]
NTAIL = NWIN - 5120

class Gen3(Gen2):
    def __init__(g, ds0=0, dstep=5, ld0=60, ldstep=14, st0=8, ststep=5.5, wstep=12, x10=216, x1step=8, tA=24, wbar=350, tr_nb=470, c1=0, xlpos=18, aord=1, n1=12, bar1=1, patA=0, warm=0, warm2=0, warmp=0, w2nb=40, lordS='h', **kw):
        g.lordS = lordS
        g.patA = patA; g.warm = warm; g.warm2 = warm2; g.warmp = warmp; g.w2nb = w2nb
        g.xlpos = xlpos; g.aord = aord; g.n1 = n1; g.bar1 = bar1
        Gen2.__init__(g, ld0=ld0, ldstep=ldstep, st0=st0, ststep=ststep, wstep=wstep, lord='h', tail=True, tr_nb=tr_nb, c1=c1, **kw)
        g.ds0 = ds0; g.dstep = dstep; g.x10 = x10; g.x1step = x1step; g.tA = tA; g.wbar = wbar
    def xload(g, k, sb, dst=("a", aRAW), srd=sXP):
        if not g.patA: return Gen2.xload(g, k, sb, dst, srd)
        t, st = divmod(k, 6)
        kk = g.lo[k]
        return GL((dst[0], dst[1] + 4*kk, 4), vLA[2*t], srd, s(sb), 64*st, g.ntl)
    def rdf(g, k, f, toks=(), dl=None):
        b, o = frag_lds(f)
        return DSR(g.slot(k), b, o, list(toks), dl=dl)
    def st_addr(g, q, r, B):
        if q == 3: return vLS[r], B[0], 0
        if q == 0: return vSA[0], B[0], 384*r
        if q == 1: return vSA[1], B[r], 0
        return vSA[2], B[r >> 1], 384*(r & 1)
    def out_cvt(g, ob, op, r):
        return [VA("v_cvt_pk_bf16_f32", v(op+k), v(ob + 8*k + r), v(ob + 8*k + 4 + r)) for k in range(2)]
    def deferred(g, paced=True):
        o = []
        for r in range(4): o += g.out_cvt(vTACC + 16, P2[10+r], r)
        for i in range(12):
            q, r = divmod(i, 4)
            ad, sb, im = g.st_addr(q, r, sBp)
            x = GS(v(P2[2+i], 2), ad, sO, s(sb), im + 256, g.nts)
            if paced: x.nb = g.ds0 + g.dstep*i
            o.append(x)
        return o

    def body(g, first):
        o = []; R = g.ring
        nm = [0]
        def M(*x): nm[0] += 1; o.append(MF(*x))
        NT = 4 if first else 3
        tot = 624 + (144 if first else 0)
        seq = (list(range(72))*3 if first else list(range(72))) + g.seq[72:]
        nW = len(seq) - 72
        kk = [0]
        def nxt():
            k = kk[0] + R; kk[0] += 1
            if k >= len(seq): o.append(g.rdf(k, k - len(seq), dl=-40 + k - len(seq)))
            else: o.append(g.rdf(k, seq[k], ["Wrdy"] if (first and k >= nW) else []))
        def sph(q):
            for i in g.s_phase(q): o.append(i); nm[0] += 1
            o.extend(g.softmax(q))
        def tphase(tiles):
            n = len(tiles)
            for j in range(6):
                def acc(b, x): return vTACC + 8*n*(j & 1) + 4*n*b + 4*x
                for st in range(6):
                    for b in range(2):
                        for x, t in enumerate(tiles):
                            d = v(acc(b, x), 4)
                            M(d, g.slot(kk[0]), X(t, st), d if st else None)
                        nxt()
                for x, t in enumerate(tiles):
                    for b in range(2):
                        for hh in range(2):
                            if t < 3:
                                o.append(VA("v_cvt_pk_bf16_f32", v(TPK(t, j)[1]+2*b+hh), v(acc(b, x)+2*hh), v(acc(b, x)+2*hh+1)))
                            else:
                                tmp = vSPARE + 4*(j & 1) + 2*b + hh
                                o.append(VA("v_cvt_pk_bf16_f32", v(tmp), v(acc(b, x)+2*hh), v(acc(b, x)+2*hh+1)))
                                o.append(VA("v_accvgpr_write_b32", a(aTL + 4*j + 2*b + hh), v(tmp)))
        if not first: o += g.deferred()
        o += [SA("s_add_u32", s(sB[r]), s(sB[0]), r*ROW) for r in range(1, 4)]
        if first:
            for k in range(18):
                p = g.dma_piece(1, k)
                for i in p[:-1]: i.nb = g.wstep*k - 4
                p[-1].nb = g.wstep*k
                o += p
            bar = I("s_barrier", "B", rd=[f"Wd1_{k}" for k in range(18)], wr=["Wrdy"]); bar.nb = g.wbar
            o.append(bar)
            ph = [[3, 0], [1], [2]] if g.aord == 0 else [[0], [1], [2, 3]]
            for tl in ph:
                for t in tl:
                    if t in (1, 2):
                        for m in range(3):
                            tr = g.transp_from(3*m + t, ("a", aRAW))
                            tr[0].nb = tr[1].nb = nm[0] - g.tA
                            o += tr
                tphase(tl)
            for k in range(18):
                i = g.xload(k, sBn); i.nb = g.x10 + g.x1step*(k - k % g.trip); o.append(i)
            sph(3)
        else:
            lo_save = g.lo
            if g.lordS == 'm': g.lo = list(range(18))
            for k in range(18):
                i = g.xload(k, sBn); i.nb = int(g.ld0 + g.ldstep*(k - k % g.trip)); o.append(i)
            g.lo = lo_save
            if g.warm2:
                i = I(f"s_load_dword s{sPC+6}, s[{sPC}:{sPC+1}], 0", "S"); i.nb = g.w2nb; i.dl = -10**6; o.append(i)
            sph(3)
            tphase([0, 1, 2])
        for q in range(3): sph(q)
        def ucvt(ai, accb):
            if first: o.append(VA("v_cvt_pk_bf16_f32", v(vU + 8*ai + 6), v(vU + 8*ai + 4), v(vU + 8*ai + 5)))
            for t in range(3):
                o.append(VA("v_cvt_pk_bf16_f32", v(vU + 8*ai + 2*t), v(accb+4*t), v(accb+4*t+1)))
                o.append(VA("v_cvt_pk_bf16_f32", v(vU + 8*ai + 2*t + 1), v(accb+4*t+2), v(accb+4*t+3)))
        def umf(ai, st, accb):
            for t in range(NT):
                d = v(accb + 4*t, 4) if t < 3 else v(vU + 8*ai + 4, 4)
                M(d, X(t, st), g.slot(kk[0]), d if st else None)
            nxt()
        si = [0]
        def pv(gr, pool, m0_):
            pi = 0
            for qi, q in enumerate(QORD()):
                ob = vTACC + 16*(qi & 1)
                for ks in range(2):
                    for k in range(4):
                        d = v(ob + 4*k, 4)
                        M(d, v(Sreg(q, 2*ks), 4), v(vU + 8*(4*gr+k) + 4*ks, 4), d if ks else None)
                for r in range(2 if q == 3 else 4):
                    op = pool[pi]; pi += 1
                    if gr == 2 and q == 2: continue
                    o.extend(g.out_cvt(ob, op, r))
                    if gr == 2 and q != 3: continue
                    ad, sb, im = g.st_addr(q, r, sB)
                    i = GS(v(op, 2), ad, sO, s(sb), im + 128*gr, g.nts)
                    if gr < 2: i.nb = int(m0_ + g.st0 + g.ststep*si[0]); si[0] += 1
                    o.append(i)
        for ai in range(8):
            accb = vTACC + (24 if ai & 1 else 36)
            for st in range(6): umf(ai, st, accb)
            ucvt(ai, accb)
        m0_ = nm[0]
        pv(0, P0, m0_); pv(1, P1, m0_)
        ab = [vTACC+36, vTACC, vTACC+12, vTACC+24]
        for st in range(6):
            for k in range(4):
                umf(8+k, st, ab[k])
                if st == 5: ucvt(8+k, ab[k])
        for u in range(9):
            tr = g.transp_from(u, ("a", aRAW), dl_r=-60 + 4*u)
            tr[0].nb = tr[1].nb = g.tr_nb + (tot - 624)
            o += tr
        pv(2, P2, None)
        assert nm[0] == tot and kk[0] == len(seq)
        o += [SA("s_mov_b32", s(sBp[r]), s(sB[r]), scc_w=False) for r in range(4)]
        o += g.next_window()
        return o

    def tail_addr(g):
        o = []; A = o.append
        PR = vLA[:4]; PW = [vLA[4], vLA[5], vSW[0], vSW[1]]
        A(VA("v_lshrrev_b32", v(vTMP), 1, v(vWB[0])))
        A(SA("s_lshl_b32", s(sT[3]), s(sWAVE), 12))
        for t in range(4):
            if t < 3:
                A(SA("s_add_u32", s(sT[0]), s(sWAVE), t)); A(SA("s_sub_u32", s(sT[1]), s(sT[0]), 3))
                A(SCMP("s_cmp_ge_u32", s(sT[0]), 3)); A(SA("s_cselect_b32", s(sT[0]), s(sT[1]), s(sT[0]), scc_w=False, scc_r=True))
                A(SA("s_lshl_b32", s(sT[0]), s(sT[0]), 9)); A(SA("s_add_u32", s(sT[0]), s(sT[0]), WSB))
            else: A(SA("s_mov_b32", s(sT[0]), WSB + 1536, scc_w=False))
            A(VA("v_add_u32", v(PR[t]), s(sT[0]), v(vTMP)))
            A(VA("v_add_u32", v(PW[t]), s(sT[3]), v(PR[t])))
        return o, PR, PW
    def p_write(g, q, PW):
        return [I(f"ds_write_b64 v{PW[t]}, {rt('v', Sreg(q, 0) + (0, 2, 8, 10)[t], 2)}", "DW2", rd=[f"v{PW[t]}"] + regs("v", Sreg(q, 0) + (0, 2, 8, 10)[t], 2), wr=[f"Pw{t}"])
                for t in range(4)]
    def tail_main(g):
        o = g.deferred(); R = g.ring
        ad, PR, PW = g.tail_addr(); o += ad
        vWT = vSR[0]
        A = o.append
        A(SA("s_mul_i32", s(sT[0]), s(sWAVE), 24*1024, scc_w=False)); A(SA("s_add_u32", s(sT[0]), s(sT[0]), 72*1024))
        A(VA("v_add_u32", v(vWT), s(sT[0]), v(vWB[0])))
        A(SA("s_lshl_b32", s(sT[0]), s(sWAVE), 7)); A(SA("s_add_u32", s(sB[0]), s(sB[0]), s(sT[0])))
        o += [SA("s_add_u32", s(sB[r]), s(sB[0]), r*ROW) for r in range(1, 4)]
        for w, sm in ((1, 4), (2, 6)):
            A(SCMP("s_cmp_eq_u32", s(sWAVE), w)); A(SA("s_cselect_b64", s(sm, 2), -1, 0, scc_w=False, scc_r=True))
            for k in range(4): A(VA("v_cndmask_b32", v(vU + 8*k + 6), v(vU + 8*k + 6), v(vU + 8*(4*w+k) + 6), s(sm, 2)))
        kk = [0]
        def nxt():
            k = kk[0] + R; kk[0] += 1
            if k < 72: o.append(g.rdf(k, k))
            elif k < 96: o.append(DSR(g.slot(k), vWT, (k-72)*1024, []))
        for j in range(6):
            for st in range(6):
                for b in range(2):
                    d = v(vTACC + 32 + 8*(j & 1) + 4*b, 4)
                    A(MF(d, g.slot(kk[0]), X(0, st), d if st else None)); nxt()
            for b in range(2):
                for hh in range(2):
                    acc = vTACC + 32 + 8*(j & 1) + 4*b + 2*hh
                    A(VA("v_cvt_pk_bf16_f32", v(TPK(0, j)[1]+2*b+hh), v(acc), v(acc+1)))
        o += g.s_phase(0); o += g.softmax(0); o += g.p_write(0, PW)
        A(I("s_barrier", "B", rd=[f"Pw{t}" for t in range(4)], wr=["Prdy"]))
        for q in QORD():
            for t in range(4):
                d = Sreg(q, 0) + (0, 2, 8, 10)[t]
                A(I(f"ds_read_b64 {rt('v', d, 2)}, v{PR[t]} offset:{4096*q}", "DR", rd=[f"v{PR[t]}", "Prdy"], wr=regs("v", d, 2)))
        for k in range(4):
            accb = vTACC + (24 if k & 1 else 36)
            for st in range(6):
                for t in range(3):
                    d = v(accb + 4*t, 4)
                    A(MF(d, X(t, st), g.slot(kk[0]), d if st else None))
                nxt()
            for t in range(3):
                A(VA("v_cvt_pk_bf16_f32", v(vU + 8*k + 2*t), v(accb+4*t), v(accb+4*t+1)))
                A(VA("v_cvt_pk_bf16_f32", v(vU + 8*k + 2*t + 1), v(accb+4*t+2), v(accb+4*t+3)))
        pool = [vU + 32 + 2*i for i in range(14)]; pi = 0
        for qi, q in enumerate(QORD()):
            ob = vTACC + 16*(qi & 1)
            for ks in range(2):
                for k in range(4):
                    d = v(ob + 4*k, 4)
                    A(MF(d, v(Sreg(q, 2*ks), 4), v(vU + 8*k + 4*ks, 4), d if ks else None))
            for r in range(2 if q == 3 else 4):
                op = pool[pi]; pi += 1
                o += g.out_cvt(ob, op, r)
                ad_, sb, im = g.st_addr(q, r, sB)
                A(GS(v(op, 2), ad_, sO, s(sb), im, g.nts))
        return o
    def tail_L(g):
        o = g.deferred(paced=False)
        ad, PR, PW = g.tail_addr(); o += ad
        o += g.s_phase(3); o += g.softmax(3); o += g.p_write(3, PW)
        o.append(I("s_barrier", "B", rd=[f"Pw{t}" for t in range(4)], wr=["Prdy"]))
        return o

    def prologue(g):
        g.pro = "MX3"
        B = Gen2.prologue(g)
        if g.warm or g.warm2:
            p = B["p0"]
            i0 = [k for k, c in enumerate(p) if c.txt.startswith("s_waitcnt lgkmcnt(0)")][0] + 1
            w = [F(f"s_getpc_b64 s[{sPC}:{sPC+1}]"), F(f"s_and_b32 s{sPC}, s{sPC}, 0xffffff00"),
                 F(f"s_lshr_b32 s{sPC+2}, s2, 3"), F(f"s_lshl_b32 s{sPC+2}, s{sPC+2}, 2"), F(f"s_add_u32 s{sPC+2}, s{sPC+2}, s{sWAVE}")]
            pre = w
            w = []
            if g.warm:
                w += [F(f"s_mul_i32 s{sPC+3}, s{sPC+2}, {64*g.warm}"), F(f"s_min_u32 s{sPC+3}, s{sPC+3}, L_end-{KN}-{64*g.warm}+64"),
                      F(f"s_add_u32 s{sPC+4}, s{sPC}, s{sPC+3}"), F(f"s_addc_u32 s{sPC+5}, s{sPC+1}, 0")]
                w += [F(f"s_load_dword s{sPC+6}, s[{sPC+4}:{sPC+5}], {64*k}") for k in range(g.warm)]
            if g.warm2:
                w += [F(f"s_lshl_b32 s{sPC+3}, s{sPC+2}, 6"), F(f"s_min_u32 s{sPC+3}, s{sPC+3}, L_end-L_disp"),
                      F(f"s_add_u32 s{sPC+3}, s{sPC+3}, L_disp-{KN}"),
                      F(f"s_add_u32 s{sPC}, s{sPC}, s{sPC+3}"), F(f"s_addc_u32 s{sPC+1}, s{sPC+1}, 0")]
            p[2:2] = pre[:2]
            i0 += 2
            i1 = max(k for k, c in enumerate(p) if c.k == "GD") + 1
            p[i1:i1] = pre[2:] + w
        return B

    def main_kernel(g):
        assert 144 % g.ring == 0
        B = g.prologue()
        B["b0"], _ = schedule(g.body(True), g.lds_lat, verbose=True, name="b0")
        body, _ = schedule(g.body(False), g.lds_lat, verbose=True, name="body")
        cmp_ = F(f"s_cmp_lt_u32 s{sN}, 4", rd=[f"s{sN}"])
        B["body"] = [F(".p2align 6"), F("L_loop:")] + body + [cmp_, F("s_cbranch_scc1 L_loop")]
        B["disp"] = [F("L_disp:"), F(f"s_cmp_eq_u32 s{sN}, 4"), F("s_cbranch_scc1 L_rot"), F(f"s_cmp_ge_u32 s2, {NTAIL}"), F("s_cbranch_scc1 L_epi"),
                     F(f"s_cmp_eq_u32 s{sWAVE}, 3"), F("s_cbranch_scc1 L_tailL")]
        B["tail"], _ = schedule(g.tail_main(), g.lds_lat, verbose=True, name="tail")
        tl, _ = schedule(g.tail_L(), g.lds_lat, verbose=True, name="tailL")
        B["tailL"] = [F("L_tailL:")] + tl
        B["epi"] = [F("L_epi:")] + g.deferred(paced=False)
        rot = ["L_rot:", f"s_cmp_eq_u32 s{sWAVE}, 1", "s_cbranch_scc1 L_r1", f"s_cmp_eq_u32 s{sWAVE}, 2", "s_cbranch_scc0 L_loop"]
        for b in range(2): rot += [f"v_mov_b32 v{vTMP}, v{vLA[4+b]}", f"v_mov_b32 v{vLA[4+b]}, v{vLA[2+b]}", f"v_mov_b32 v{vLA[2+b]}, v{vLA[b]}", f"v_mov_b32 v{vLA[b]}, v{vTMP}"]
        rot += ["s_branch L_loop", "L_r1:"]
        for b in range(2): rot += [f"v_mov_b32 v{vTMP}, v{vLA[b]}", f"v_mov_b32 v{vLA[b]}, v{vLA[2+b]}", f"v_mov_b32 v{vLA[2+b]}, v{vLA[4+b]}", f"v_mov_b32 v{vLA[4+b]}, v{vTMP}"]
        rot += ["s_branch L_loop"]
        pre = ["p0", "p1", "b0", "body", "body", "body"]
        paths = [pre + ["disp", "tail"], pre + ["disp", "tailL"], pre + ["disp", "epi"]]
        B = insert_waits(B, paths)
        B, nn = fix_hazards(B, paths)
        T = {b: [c.txt for c in B[b]] for b in B}
        if g.diag:
            T["p0"].insert(2, f"s_memtime s[{SD}:{SD+1}]"); T["p0"].insert(3, "s_memrealtime s[76:77]")
            T["p1"].insert(T["p1"].index("s_barrier") + 1, f"s_memtime s[{SD+2}:{SD+3}]")
            T["p1"].append(f"s_memtime s[{SD+4}:{SD+5}]")
            for b, marks in (("b0", g.diag[0]), ("body", g.diag[1]), ("tail", g.diag[2])):
                nb = []; m = 0; k = 3
                for t in T[b]:
                    if t.startswith("v_mfma"):
                        if m in marks: nb.append(f"s_memtime s[{SD+2*k}:{SD+1+2*k}]"); k += 1
                        m += 1
                    if t == cmp_.txt and b == "body": nb += g.stamp_out(k)
                    nb.append(t)
                if b == "tail": nb.append(f"s_add_u32 s{sN}, s{sN}, 1")
                if b != "body": nb += g.stamp_out(k)
                assert k < 14
                T[b] = nb
        o = [f".globl {KN}", ".p2align 8", f".type {KN},@function", f"{KN}:"]
        for b in ["p0", "p1", "b0", "body", "disp", "tail"]: o += T[b]
        o += ["s_endpgm"] + T["tailL"] + ["s_endpgm"] + rot + T["epi"]
        o += ["L_end:", "s_endpgm"]
        return o

def build3(path, **kw):
    g = Gen3(**kw)
    hdr = open("standalone__swin_window_attn__vision.s.ref").read().split("\n")[:7]
    o = hdr + [f"; @launch kernel={PN} grid=(144,1,1) block=(64,1,1) lds=0",
               f"; @launch kernel={KN} grid=(256,1,1) block=(256,1,1) lds=163840",
               '.amdgcn_target "amdgcn-amd-amdhsa--gfx950"', ".text"]
    pk = prep_kernel2()
    if g.warmp:
        i0 = pk.index("s_cbranch_scc1 LP_end") + 1
        pk[i0:i0] = ["s_getpc_b64 s[34:35]", "LP_pc:", f"s_sub_u32 s34, s34, LP_pc-{KN}", "s_subb_u32 s35, s35, 0",
                     "s_lshr_b32 s36, s2, 3", "s_lshl_b32 s36, s36, 12", "v_lshlrev_b32 v120, 6, v0", "v_add_u32 v120, s36, v120",
                     f"v_min_u32 v120, L_end-{KN}, v120", "global_load_dword v121, v120, s[34:35]"]
    o += g.main_kernel() + pk
    o += ['.section .rodata,"a"'] + kd(KN, 512, 256, 100) + kd(PN, 136, 136, 40)
    open(path, "w").write("\n".join(o) + "\n")

if __name__ == "__main__":
    kw = eval("dict(" + (sys.argv[2] if len(sys.argv) > 2 else "") + ")")
    build3(sys.argv[1], **kw)
```

```python
import sys
from gen2 import *

sBp = [44, 45, 46, 47]
sPC = 88
sPFb = 95
P0 = [Sreg(q, kt) + 2*h for q in range(2) for kt in (1, 3) for h in range(2)] + [vSPARE + 2*i for i in range(6)]
P1 = [vTPK + 2*i for i in range(4)] + [Sreg(q, kt) + 2*h for q in (3, 2) for kt in (1, 3) for h in range(2)] + P0[:2]
P2 = P1[:2] + P0[2:]
NTAIL = NWIN - 5120

class Gen3(Gen2):
    def __init__(g, ds0=0, dstep=5, ld0=60, ldstep=14, st0=8, ststep=5.5, wstep=12, x10=216, x1step=8, tA=24, wbar=350, tr_nb=470, c1=0, xlpos=18, aord=1, n1=12, bar1=1, patA=0, warm=0, warm2=0, warmp=0, w2nb=40, lordS='h', pf=None, pf0=None, pffl='nt', **kw):
        g.lordS = lordS; g.pf = pf; g.pf0 = pf0; g.pffl = pffl
        g.patA = patA; g.warm = warm; g.warm2 = warm2; g.warmp = warmp; g.w2nb = w2nb
        g.xlpos = xlpos; g.aord = aord; g.n1 = n1; g.bar1 = bar1
        Gen2.__init__(g, ld0=ld0, ldstep=ldstep, st0=st0, ststep=ststep, wstep=wstep, lord='h', tail=True, tr_nb=tr_nb, c1=c1, **kw)
        g.ds0 = ds0; g.dstep = dstep; g.x10 = x10; g.x1step = x1step; g.tA = tA; g.wbar = wbar
    def xload(g, k, sb, dst=("a", aRAW), srd=sXP):
        if not g.patA: return Gen2.xload(g, k, sb, dst, srd)
        t, st = divmod(k, 6)
        kk = g.lo[k]
        return GL((dst[0], dst[1] + 4*kk, 4), vLA[2*t], srd, s(sb), 64*st, g.ntl)
    def next_window(g):
        o = Gen2.next_window(g)
        if g.pf:
            o += [SA("s_add_u32", s(sT[3]), s(sW), 2048)] + g.winbase(sPFb, sT[3])
            o += [SCMP("s_cmp_le_u32", s(sN), 2), SA("s_cselect_b32", s(sX+2), XB, 0, scc_w=False, scc_r=True)]
        return o
    def pfl(g, pos):
        o = []
        for k, p in enumerate(pos):
            i = GL(a(240 + k), 0, sX, s(sPFb), 128*k, g.pffl, op="buffer_load_dword"); i.nb = p; i.dl = -10**6; o.append(i)
        return o
    def rdf(g, k, f, toks=(), dl=None):
        b, o = frag_lds(f)
        return DSR(g.slot(k), b, o, list(toks), dl=dl)
    def st_addr(g, q, r, B):
        if q == 3: return vLS[r], B[0], 0
        if q == 0: return vSA[0], B[0], 384*r
        if q == 1: return vSA[1], B[r], 0
        return vSA[2], B[r >> 1], 384*(r & 1)
    def out_cvt(g, ob, op, r):
        return [VA("v_cvt_pk_bf16_f32", v(op+k), v(ob + 8*k + r), v(ob + 8*k + 4 + r)) for k in range(2)]
    def deferred(g, paced=True):
        o = []
        for r in range(4): o += g.out_cvt(vTACC + 16, P2[10+r], r)
        for i in range(12):
            q, r = divmod(i, 4)
            ad, sb, im = g.st_addr(q, r, sBp)
            x = GS(v(P2[2+i], 2), ad, sO, s(sb), im + 256, g.nts)
            if paced: x.nb = g.ds0 + g.dstep*i
            o.append(x)
        return o

    def body(g, first):
        o = []; R = g.ring
        nm = [0]
        def M(*x): nm[0] += 1; o.append(MF(*x))
        NT = 4 if first else 3
        tot = 624 + (144 if first else 0)
        seq = (list(range(72))*3 if first else list(range(72))) + g.seq[72:]
        nW = len(seq) - 72
        kk = [0]
        def nxt():
            k = kk[0] + R; kk[0] += 1
            if k >= len(seq): o.append(g.rdf(k, k - len(seq), dl=-40 + k - len(seq)))
            else: o.append(g.rdf(k, seq[k], ["Wrdy"] if (first and k >= nW) else []))
        def sph(q):
            for i in g.s_phase(q): o.append(i); nm[0] += 1
            o.extend(g.softmax(q))
        def tphase(tiles):
            n = len(tiles)
            for j in range(6):
                def acc(b, x): return vTACC + 8*n*(j & 1) + 4*n*b + 4*x
                for st in range(6):
                    for b in range(2):
                        for x, t in enumerate(tiles):
                            d = v(acc(b, x), 4)
                            M(d, g.slot(kk[0]), X(t, st), d if st else None)
                        nxt()
                for x, t in enumerate(tiles):
                    for b in range(2):
                        for hh in range(2):
                            if t < 3:
                                o.append(VA("v_cvt_pk_bf16_f32", v(TPK(t, j)[1]+2*b+hh), v(acc(b, x)+2*hh), v(acc(b, x)+2*hh+1)))
                            else:
                                tmp = vSPARE + 4*(j & 1) + 2*b + hh
                                o.append(VA("v_cvt_pk_bf16_f32", v(tmp), v(acc(b, x)+2*hh), v(acc(b, x)+2*hh+1)))
                                o.append(VA("v_accvgpr_write_b32", a(aTL + 4*j + 2*b + hh), v(tmp)))
        if not first: o += g.deferred()
        if g.pf: o += g.pfl(g.pf0 if first else g.pf)
        o += [SA("s_add_u32", s(sB[r]), s(sB[0]), r*ROW) for r in range(1, 4)]
        if first:
            for k in range(18):
                p = g.dma_piece(1, k)
                for i in p[:-1]: i.nb = g.wstep*k - 4
                p[-1].nb = g.wstep*k
                o += p
            bar = I("s_barrier", "B", rd=[f"Wd1_{k}" for k in range(18)], wr=["Wrdy"]); bar.nb = g.wbar
            o.append(bar)
            ph = [[3, 0], [1], [2]] if g.aord == 0 else [[0], [1], [2, 3]]
            for tl in ph:
                for t in tl:
                    if t in (1, 2):
                        for m in range(3):
                            tr = g.transp_from(3*m + t, ("a", aRAW))
                            tr[0].nb = tr[1].nb = nm[0] - g.tA
                            o += tr
                tphase(tl)
            for k in range(18):
                i = g.xload(k, sBn); i.nb = g.x10 + g.x1step*(k - k % g.trip); o.append(i)
            sph(3)
        else:
            lo_save = g.lo
            if g.lordS == 'm': g.lo = list(range(18))
            for k in range(18):
                i = g.xload(k, sBn); i.nb = int(g.ld0 + g.ldstep*(k - k % g.trip)); o.append(i)
            g.lo = lo_save
            if g.warm2:
                i = I(f"s_load_dword s{sPC+6}, s[{sPC}:{sPC+1}], 0", "S"); i.nb = g.w2nb; i.dl = -10**6; o.append(i)
            sph(3)
            tphase([0, 1, 2])
        for q in range(3): sph(q)
        def ucvt(ai, accb):
            if first: o.append(VA("v_cvt_pk_bf16_f32", v(vU + 8*ai + 6), v(vU + 8*ai + 4), v(vU + 8*ai + 5)))
            for t in range(3):
                o.append(VA("v_cvt_pk_bf16_f32", v(vU + 8*ai + 2*t), v(accb+4*t), v(accb+4*t+1)))
                o.append(VA("v_cvt_pk_bf16_f32", v(vU + 8*ai + 2*t + 1), v(accb+4*t+2), v(accb+4*t+3)))
        def umf(ai, st, accb):
            for t in range(NT):
                d = v(accb + 4*t, 4) if t < 3 else v(vU + 8*ai + 4, 4)
                M(d, X(t, st), g.slot(kk[0]), d if st else None)
            nxt()
        si = [0]
        def pv(gr, pool, m0_):
            pi = 0
            for qi, q in enumerate(QORD()):
                ob = vTACC + 16*(qi & 1)
                for ks in range(2):
                    for k in range(4):
                        d = v(ob + 4*k, 4)
                        M(d, v(Sreg(q, 2*ks), 4), v(vU + 8*(4*gr+k) + 4*ks, 4), d if ks else None)
                for r in range(2 if q == 3 else 4):
                    op = pool[pi]; pi += 1
                    if gr == 2 and q == 2: continue
                    o.extend(g.out_cvt(ob, op, r))
                    if gr == 2 and q != 3: continue
                    ad, sb, im = g.st_addr(q, r, sB)
                    i = GS(v(op, 2), ad, sO, s(sb), im + 128*gr, g.nts)
                    if gr < 2: i.nb = int(m0_ + g.st0 + g.ststep*si[0]); si[0] += 1
                    o.append(i)
        for ai in range(8):
            accb = vTACC + (24 if ai & 1 else 36)
            for st in range(6): umf(ai, st, accb)
            ucvt(ai, accb)
        m0_ = nm[0]
        pv(0, P0, m0_); pv(1, P1, m0_)
        ab = [vTACC+36, vTACC, vTACC+12, vTACC+24]
        for st in range(6):
            for k in range(4):
                umf(8+k, st, ab[k])
                if st == 5: ucvt(8+k, ab[k])
        for u in range(9):
            tr = g.transp_from(u, ("a", aRAW), dl_r=-60 + 4*u)
            tr[0].nb = tr[1].nb = g.tr_nb + (tot - 624)
            o += tr
        pv(2, P2, None)
        assert nm[0] == tot and kk[0] == len(seq)
        o += [SA("s_mov_b32", s(sBp[r]), s(sB[r]), scc_w=False) for r in range(4)]
        o += g.next_window()
        return o

    def tail_addr(g):
        o = []; A = o.append
        PR = vLA[:4]; PW = [vLA[4], vLA[5], vSW[0], vSW[1]]
        A(VA("v_lshrrev_b32", v(vTMP), 1, v(vWB[0])))
        A(SA("s_lshl_b32", s(sT[3]), s(sWAVE), 12))
        for t in range(4):
            if t < 3:
                A(SA("s_add_u32", s(sT[0]), s(sWAVE), t)); A(SA("s_sub_u32", s(sT[1]), s(sT[0]), 3))
                A(SCMP("s_cmp_ge_u32", s(sT[0]), 3)); A(SA("s_cselect_b32", s(sT[0]), s(sT[1]), s(sT[0]), scc_w=False, scc_r=True))
                A(SA("s_lshl_b32", s(sT[0]), s(sT[0]), 9)); A(SA("s_add_u32", s(sT[0]), s(sT[0]), WSB))
            else: A(SA("s_mov_b32", s(sT[0]), WSB + 1536, scc_w=False))
            A(VA("v_add_u32", v(PR[t]), s(sT[0]), v(vTMP)))
            A(VA("v_add_u32", v(PW[t]), s(sT[3]), v(PR[t])))
        return o, PR, PW
    def p_write(g, q, PW):
        return [I(f"ds_write_b64 v{PW[t]}, {rt('v', Sreg(q, 0) + (0, 2, 8, 10)[t], 2)}", "DW2", rd=[f"v{PW[t]}"] + regs("v", Sreg(q, 0) + (0, 2, 8, 10)[t], 2), wr=[f"Pw{t}"])
                for t in range(4)]
    def tail_main(g):
        o = g.deferred(); R = g.ring
        ad, PR, PW = g.tail_addr(); o += ad
        vWT = vSR[0]
        A = o.append
        A(SA("s_mul_i32", s(sT[0]), s(sWAVE), 24*1024, scc_w=False)); A(SA("s_add_u32", s(sT[0]), s(sT[0]), 72*1024))
        A(VA("v_add_u32", v(vWT), s(sT[0]), v(vWB[0])))
        A(SA("s_lshl_b32", s(sT[0]), s(sWAVE), 7)); A(SA("s_add_u32", s(sB[0]), s(sB[0]), s(sT[0])))
        o += [SA("s_add_u32", s(sB[r]), s(sB[0]), r*ROW) for r in range(1, 4)]
        for w, sm in ((1, 4), (2, 6)):
            A(SCMP("s_cmp_eq_u32", s(sWAVE), w)); A(SA("s_cselect_b64", s(sm, 2), -1, 0, scc_w=False, scc_r=True))
            for k in range(4): A(VA("v_cndmask_b32", v(vU + 8*k + 6), v(vU + 8*k + 6), v(vU + 8*(4*w+k) + 6), s(sm, 2)))
        kk = [0]
        def nxt():
            k = kk[0] + R; kk[0] += 1
            if k < 72: o.append(g.rdf(k, k))
            elif k < 96: o.append(DSR(g.slot(k), vWT, (k-72)*1024, []))
        for j in range(6):
            for st in range(6):
                for b in range(2):
                    d = v(vTACC + 32 + 8*(j & 1) + 4*b, 4)
                    A(MF(d, g.slot(kk[0]), X(0, st), d if st else None)); nxt()
            for b in range(2):
                for hh in range(2):
                    acc = vTACC + 32 + 8*(j & 1) + 4*b + 2*hh
                    A(VA("v_cvt_pk_bf16_f32", v(TPK(0, j)[1]+2*b+hh), v(acc), v(acc+1)))
        o += g.s_phase(0); o += g.softmax(0); o += g.p_write(0, PW)
        A(I("s_barrier", "B", rd=[f"Pw{t}" for t in range(4)], wr=["Prdy"]))
        for q in QORD():
            for t in range(4):
                d = Sreg(q, 0) + (0, 2, 8, 10)[t]
                A(I(f"ds_read_b64 {rt('v', d, 2)}, v{PR[t]} offset:{4096*q}", "DR", rd=[f"v{PR[t]}", "Prdy"], wr=regs("v", d, 2)))
        for k in range(4):
            accb = vTACC + (24 if k & 1 else 36)
            for st in range(6):
                for t in range(3):
                    d = v(accb + 4*t, 4)
                    A(MF(d, X(t, st), g.slot(kk[0]), d if st else None))
                nxt()
            for t in range(3):
                A(VA("v_cvt_pk_bf16_f32", v(vU + 8*k + 2*t), v(accb+4*t), v(accb+4*t+1)))
                A(VA("v_cvt_pk_bf16_f32", v(vU + 8*k + 2*t + 1), v(accb+4*t+2), v(accb+4*t+3)))
        pool = [vU + 32 + 2*i for i in range(14)]; pi = 0
        for qi, q in enumerate(QORD()):
            ob = vTACC + 16*(qi & 1)
            for ks in range(2):
                for k in range(4):
                    d = v(ob + 4*k, 4)
                    A(MF(d, v(Sreg(q, 2*ks), 4), v(vU + 8*k + 4*ks, 4), d if ks else None))
            for r in range(2 if q == 3 else 4):
                op = pool[pi]; pi += 1
                o += g.out_cvt(ob, op, r)
                ad_, sb, im = g.st_addr(q, r, sB)
                A(GS(v(op, 2), ad_, sO, s(sb), im, g.nts))
        return o
    def tail_L(g):
        o = g.deferred(paced=False)
        ad, PR, PW = g.tail_addr(); o += ad
        o += g.s_phase(3); o += g.softmax(3); o += g.p_write(3, PW)
        o.append(I("s_barrier", "B", rd=[f"Pw{t}" for t in range(4)], wr=["Prdy"]))
        return o

    def prologue(g):
        g.pro = "MX3"
        B = Gen2.prologue(g)
        if g.pf:
            T = [vTACC+k for k in range(16)]
            q = [VA("v_mul_u32_u24", v(T[4]), 37, v(0)), VA("v_lshrrev_b32", v(T[4]), 8, v(T[4])),
                 VA("v_mul_u32_u24", v(T[5]), ROW - 7*384, v(T[4])), VA("v_mul_u32_u24", v(T[6]), 384, v(0)), VA("v_add_u32", v(T[5]), v(T[5]), v(T[6])),
                 VA("v_cmp_gt_u32", "vcc", 49, v(0)), VA("v_cndmask_b32", v(0), v(vOOB), v(T[5]), "vcc"),
                 SA("s_add_u32", s(sT[3]), s(sW), 2048)] + g.winbase(sPFb, sT[3])
            q += [SA("s_mov_b32", s(sX), s(4), scc_w=False), SA("s_mov_b32", s(sX+1), s(5), scc_w=False), SA("s_mov_b32", s(sX+2), XB, scc_w=False), SA("s_mov_b32", s(sX+3), "0x20000", scc_w=False)]
            B["p0"] += q
        if g.warm or g.warm2:
            p = B["p0"]
            i0 = [k for k, c in enumerate(p) if c.txt.startswith("s_waitcnt lgkmcnt(0)")][0] + 1
            w = [F(f"s_getpc_b64 s[{sPC}:{sPC+1}]"), F(f"s_and_b32 s{sPC}, s{sPC}, 0xffffff00"),
                 F(f"s_lshr_b32 s{sPC+2}, s2, 3"), F(f"s_lshl_b32 s{sPC+2}, s{sPC+2}, 2"), F(f"s_add_u32 s{sPC+2}, s{sPC+2}, s{sWAVE}")]
            pre = w
            w = []
            if g.warm:
                w += [F(f"s_mul_i32 s{sPC+3}, s{sPC+2}, {64*g.warm}"), F(f"s_min_u32 s{sPC+3}, s{sPC+3}, L_end-{KN}-{64*g.warm}+64"),
                      F(f"s_add_u32 s{sPC+4}, s{sPC}, s{sPC+3}"), F(f"s_addc_u32 s{sPC+5}, s{sPC+1}, 0")]
                w += [F(f"s_load_dword s{sPC+6}, s[{sPC+4}:{sPC+5}], {64*k}") for k in range(g.warm)]
            if g.warm2:
                w += [F(f"s_lshl_b32 s{sPC+3}, s{sPC+2}, 6"), F(f"s_min_u32 s{sPC+3}, s{sPC+3}, L_end-L_disp"),
                      F(f"s_add_u32 s{sPC+3}, s{sPC+3}, L_disp-{KN}"),
                      F(f"s_add_u32 s{sPC}, s{sPC}, s{sPC+3}"), F(f"s_addc_u32 s{sPC+1}, s{sPC+1}, 0")]
            p[2:2] = pre[:2]
            i0 += 2
            i1 = max(k for k, c in enumerate(p) if c.k == "GD") + 1
            p[i1:i1] = pre[2:] + w
        return B

    def main_kernel(g):
        assert 144 % g.ring == 0
        B = g.prologue()
        B["b0"], _ = schedule(g.body(True), g.lds_lat, verbose=True, name="b0")
        body, _ = schedule(g.body(False), g.lds_lat, verbose=True, name="body")
        cmp_ = F(f"s_cmp_lt_u32 s{sN}, 4", rd=[f"s{sN}"])
        B["body"] = [F(".p2align 6"), F("L_loop:")] + body + [cmp_, F("s_cbranch_scc1 L_loop")]
        B["disp"] = [F("L_disp:"), F(f"s_cmp_eq_u32 s{sN}, 4"), F("s_cbranch_scc1 L_rot"), F(f"s_cmp_ge_u32 s2, {NTAIL}"), F("s_cbranch_scc1 L_epi"),
                     F(f"s_cmp_eq_u32 s{sWAVE}, 3"), F("s_cbranch_scc1 L_tailL")]
        B["tail"], _ = schedule(g.tail_main(), g.lds_lat, verbose=True, name="tail")
        tl, _ = schedule(g.tail_L(), g.lds_lat, verbose=True, name="tailL")
        B["tailL"] = [F("L_tailL:")] + tl
        B["epi"] = [F("L_epi:")] + g.deferred(paced=False)
        rot = ["L_rot:", f"s_cmp_eq_u32 s{sWAVE}, 1", "s_cbranch_scc1 L_r1", f"s_cmp_eq_u32 s{sWAVE}, 2", "s_cbranch_scc0 L_loop"]
        for b in range(2): rot += [f"v_mov_b32 v{vTMP}, v{vLA[4+b]}", f"v_mov_b32 v{vLA[4+b]}, v{vLA[2+b]}", f"v_mov_b32 v{vLA[2+b]}, v{vLA[b]}", f"v_mov_b32 v{vLA[b]}, v{vTMP}"]
        rot += ["s_branch L_loop", "L_r1:"]
        for b in range(2): rot += [f"v_mov_b32 v{vTMP}, v{vLA[b]}", f"v_mov_b32 v{vLA[b]}, v{vLA[2+b]}", f"v_mov_b32 v{vLA[2+b]}, v{vLA[4+b]}", f"v_mov_b32 v{vLA[4+b]}, v{vTMP}"]
        rot += ["s_branch L_loop"]
        pre = ["p0", "p1", "b0", "body", "body", "body"]
        paths = [pre + ["disp", "tail"], pre + ["disp", "tailL"], pre + ["disp", "epi"]]
        B = insert_waits(B, paths)
        B, nn = fix_hazards(B, paths)
        T = {b: [c.txt for c in B[b]] for b in B}
        if g.diag:
            T["p0"].insert(2, f"s_memtime s[{SD}:{SD+1}]"); T["p0"].insert(3, "s_memrealtime s[76:77]")
            T["p1"].insert(T["p1"].index("s_barrier") + 1, f"s_memtime s[{SD+2}:{SD+3}]")
            T["p1"].append(f"s_memtime s[{SD+4}:{SD+5}]")
            for b, marks in (("b0", g.diag[0]), ("body", g.diag[1]), ("tail", g.diag[2])):
                nb = []; m = 0; k = 3
                for t in T[b]:
                    if t.startswith("v_mfma"):
                        if m in marks: nb.append(f"s_memtime s[{SD+2*k}:{SD+1+2*k}]"); k += 1
                        m += 1
                    if t == cmp_.txt and b == "body": nb += g.stamp_out(k)
                    nb.append(t)
                if b == "tail": nb.append(f"s_add_u32 s{sN}, s{sN}, 1")
                if b != "body": nb += g.stamp_out(k)
                assert k < 14
                T[b] = nb
        o = [f".globl {KN}", ".p2align 8", f".type {KN},@function", f"{KN}:"]
        for b in ["p0", "p1", "b0", "body", "disp", "tail"]: o += T[b]
        o += ["s_endpgm"] + T["tailL"] + ["s_endpgm"] + rot + T["epi"]
        o += ["L_end:", "s_endpgm"]
        return o

def build3(path, **kw):
    g = Gen3(**kw)
    hdr = open("standalone__swin_window_attn__vision.s.ref").read().split("\n")[:7]
    o = hdr + [f"; @launch kernel={PN} grid=(144,1,1) block=(64,1,1) lds=0",
               f"; @launch kernel={KN} grid=(256,1,1) block=(256,1,1) lds=163840",
               '.amdgcn_target "amdgcn-amd-amdhsa--gfx950"', ".text"]
    pk = prep_kernel2()
    if g.warmp:
        i0 = pk.index("s_cbranch_scc1 LP_end") + 1
        pk[i0:i0] = ["s_getpc_b64 s[34:35]", "LP_pc:", f"s_sub_u32 s34, s34, LP_pc-{KN}", "s_subb_u32 s35, s35, 0",
                     "s_lshr_b32 s36, s2, 3", "s_lshl_b32 s36, s36, 12", "v_lshlrev_b32 v120, 6, v0", "v_add_u32 v120, s36, v120",
                     f"v_min_u32 v120, L_end-{KN}, v120", "global_load_dword v121, v120, s[34:35]"]
    o += g.main_kernel() + pk
    o += ['.section .rodata,"a"'] + kd(KN, 512, 256, 100) + kd(PN, 136, 136, 40)
    open(path, "w").write("\n".join(o) + "\n")

if __name__ == "__main__":
    kw = eval("dict(" + (sys.argv[2] if len(sys.argv) > 2 else "") + ")")
    build3(sys.argv[1], **kw)
```

```python
import sys
from gen3 import *

sDBG = sX
sTK = 87
aXC = 240

class Gen4(Gen3):
    def __init__(g, tknb=330, tkn=3, **kw):
        Gen3.__init__(g, **kw)
        g.tail = False; g.tknb = tknb; g.tkn = tkn
    def next_window(g):
        o = Gen2.next_window(g)
        o += [SCMP("s_cmp_eq_u32", s(sN), s(sTK)), SA("s_cselect_b32", s(sDBG+2), 4, 0, scc_w=False, scc_r=True)]
        return o
    def body(g, first):
        o = Gen3.body(g, first)
        if not first:
            i0 = VA("v_mov_b32", v(0), 1); i0.nb = g.tknb - 8
            i = I(f"buffer_atomic_add v0, v{vWB[0]}, s[{sDBG}:{sDBG+3}], 0 offen sc0 sc1", "GL", rd=["v0", f"v{vWB[0]}"] + regs("s", sDBG, 4), wr=["v0"])
            i.nb = g.tknb; i.dl = -10**6
            o = [i0, i] + o
        return o
    def prologue(g):
        B = Gen3.prologue(g)
        p = B["p0"]
        i0 = [k for k, c in enumerate(p) if c.txt.startswith("s_load_dwordx2 s[24:25]")][0]
        p.insert(i0 + 1, F(f"s_load_dwordx2 s[{sDBG}:{sDBG+1}], s[0:1], 32"))
        p += [SA("s_mov_b32", s(sDBG+2), 0, scc_w=False), SA("s_mov_b32", s(sDBG+3), "0x20000", scc_w=False),
              SCMP("s_cmp_eq_u32", s(sWAVE), 0), SA("s_cselect_b32", s(sTK), g.tkn, 99, scc_w=False, scc_r=True)]
        return B
    def rot(g):
        o = [F("L_rot:"), F("s_waitcnt lgkmcnt(0)", lg=0),
             I(f"ds_write_b32 v{vSW[0]}, v0", "DW2", rd=[f"v{vSW[0]}", "v0"], wr=["tk"]),
             VA("v_mov_b32", v(vTMP), WSB),
             F("s_waitcnt lgkmcnt(0)", lg=0), F("s_barrier"),
             I(f"ds_read_b32 v0, v{vTMP}", "DR", rd=[f"v{vTMP}"], wr=["v0"])]
        for w, sm in ((1, 4), (2, 6)):
            o += [SCMP("s_cmp_eq_u32", s(sWAVE), w), SA("s_cselect_b64", s(sm, 2), -1, 0, scc_w=False, scc_r=True)]
        T = [vTACC + 40 + k for k in range(3)]
        for b in range(2):
            for t in range(3): o.append(VA("v_cndmask_b32", v(T[t]), v(vLA[2*t+b]), v(vLA[2*((t+1) % 3)+b]), s(4, 2)))
            for t in range(3): o.append(VA("v_cndmask_b32", v(T[t]), v(T[t]), v(vLA[2*((t+2) % 3)+b]), s(6, 2)))
            for t in range(3): o.append(VA("v_mov_b32", v(vLA[2*t+b]), v(T[t])))
        o += [F("s_waitcnt lgkmcnt(0)", lg=0), F("s_barrier"),
              VA("v_readfirstlane_b32", s(sWn), v(0)), SA("s_add_u32", s(sWn), s(sWn), 5120)]
        o += g.winbase(sBn, sWn)
        o += [SCMP("s_cmp_lt_u32", s(sWn), NWIN), SA("s_cselect_b32", s(sXP+2), XB, 0, scc_w=False, scc_r=True),
              SA("s_add_u32", s(sT[0]), s(sBn), CENTER), GL(a(aXC, 4), vWB[0], sXP, s(sT[0]), 0, ""), F("s_branch L_loop")]
        return o
    def xl_stage(g):
        t0, t1 = vSPARE + 10, vSPARE + 11
        t0, t1 = vTMP, 0
        o = [SA("s_lshl_b32", s(sT[2]), s(sWAVE), 12), SA("s_add_u32", s(sT[2]), s(sT[2]), WSB + 2048),
             VA("v_add_u32", v(t0), s(sT[2]), v(vWB[0])),
             VA("v_lshrrev_b32", v(t1), 8, v(vWB[0])), VA("v_lshlrev_b32", v(t1), 4, v(t1)), VA("v_add_u32", v(t1), s(sT[2]), v(t1)),
             DSW(t0, a(aXC, 4), 0, ["XC"])]
        for st in range(6): o.append(DSR(a(aXL + 4*st, 4), t1, 64*st, ["XC"]))
        return o
    def tail_main(g):
        o = g.xl_stage() + g.deferred(); R = g.ring
        ad, PR, PW = g.tail_addr(); o += ad
        vWT = vSR[0]
        A = o.append
        A(SA("s_mul_i32", s(sT[0]), s(sWAVE), 24*1024, scc_w=False)); A(SA("s_add_u32", s(sT[0]), s(sT[0]), 72*1024))
        A(VA("v_add_u32", v(vWT), s(sT[0]), v(vWB[0])))
        A(SA("s_lshl_b32", s(sT[0]), s(sWAVE), 7)); A(SA("s_add_u32", s(sB[0]), s(sB[0]), s(sT[0])))
        o += [SA("s_add_u32", s(sB[r]), s(sB[0]), r*ROW) for r in range(1, 4)]
        kk = [0]
        def nxt():
            k = kk[0] + R; kk[0] += 1
            if k < 72: o.append(g.rdf(k, k))
            elif k < 96: o.append(DSR(g.slot(k), vWT, (k-72)*1024, []))
        for j in range(6):
            for st in range(6):
                for b in range(2):
                    d = v(vTACC + 32 + 8*(j & 1) + 4*b, 4)
                    A(MF(d, g.slot(kk[0]), X(0, st), d if st else None)); nxt()
            for b in range(2):
                for hh in range(2):
                    acc = vTACC + 32 + 8*(j & 1) + 4*b + 2*hh
                    A(VA("v_cvt_pk_bf16_f32", v(TPK(0, j)[1]+2*b+hh), v(acc), v(acc+1)))
        o += g.s_phase(0); o += g.softmax(0); o += g.p_write(0, PW)
        A(I("s_barrier", "B", rd=[f"Pw{t}" for t in range(4)], wr=["Prdy"]))
        for q in QORD():
            for t in range(4):
                d = Sreg(q, 0) + (0, 2, 8, 10)[t]
                A(I(f"ds_read_b64 {rt('v', d, 2)}, v{PR[t]} offset:{4096*q}", "DR", rd=[f"v{PR[t]}", "Prdy"], wr=regs("v", d, 2)))
        for k in range(4):
            accb = vTACC + (24 if k & 1 else 36); accL = vTACC + 4*(k & 1)
            for st in range(6):
                for t in range(4):
                    d = v(accb + 4*t, 4) if t < 3 else v(accL, 4)
                    A(MF(d, X(t, st), g.slot(kk[0]), d if st else None))
                nxt()
            for t in range(3):
                A(VA("v_cvt_pk_bf16_f32", v(vU + 8*k + 2*t), v(accb+4*t), v(accb+4*t+1)))
                A(VA("v_cvt_pk_bf16_f32", v(vU + 8*k + 2*t + 1), v(accb+4*t+2), v(accb+4*t+3)))
            A(VA("v_cvt_pk_bf16_f32", v(vU + 8*k + 6), v(accL), v(accL+1)))
        pool = [vU + 32 + 2*i for i in range(14)]; pi = 0
        for qi, q in enumerate(QORD()):
            ob = vTACC + 16*((qi + 1) & 1)
            for ks in range(2):
                for k in range(4):
                    d = v(ob + 4*k, 4)
                    A(MF(d, v(Sreg(q, 2*ks), 4), v(vU + 8*k + 4*ks, 4), d if ks else None))
            for r in range(2 if q == 3 else 4):
                op = pool[pi]; pi += 1
                o += g.out_cvt(ob, op, r)
                ad_, sb, im = g.st_addr(q, r, sB)
                A(GS(v(op, 2), ad_, sO, s(sb), im, g.nts))
        return o
    def tail_L(g):
        o = g.xl_stage() + g.deferred(); R = g.ring
        ad, PR, PW = g.tail_addr(); o += ad
        A = o.append
        kk = 0
        for j in range(6):
            for st in range(6):
                for b in range(2):
                    d = v(vTACC + 32 + 8*(j & 1) + 4*b, 4)
                    A(MF(d, g.slot(kk), X(3, st), d if st else None))
                    if kk + R < 72: A(g.rdf(kk + R, kk + R))
                    kk += 1
            for b in range(2):
                for hh in range(2):
                    acc = vTACC + 32 + 8*(j & 1) + 4*b + 2*hh; tmp = vU + 8*j + 2*b + hh
                    A(VA("v_cvt_pk_bf16_f32", v(tmp), v(acc), v(acc+1)))
                    A(VA("v_accvgpr_write_b32", a(aTL + 4*j + 2*b + hh), v(tmp)))
        o += g.s_phase(3); o += g.softmax(3); o += g.p_write(3, PW)
        o.append(I("s_barrier", "B", rd=[f"Pw{t}" for t in range(4)], wr=["Prdy"]))
        return o

    def blocks(g):
        B = g.prologue()
        B["b0"], _ = schedule(g.body(True), g.lds_lat, verbose=True, name="b0")
        return B, ["p0", "p1", "b0"], [["p0", "p1", "b0"]]
    def extra_text(g): return []

    def main_kernel(g):
        assert 144 % g.ring == 0
        B, order, pres = g.blocks()
        body, _ = schedule(g.body(False), g.lds_lat, verbose=True, name="body")
        cmp_ = F(f"s_cmp_lt_u32 s{sN}, 4", rd=[f"s{sN}"])
        B["body"] = [F(".p2align 6"), F("L_loop:")] + body + [cmp_, F("s_cbranch_scc1 L_loop")]
        B["disp"] = [F("L_disp:"), F(f"s_cmp_eq_u32 s{sN}, 4"), F("s_cbranch_scc1 L_rot"), F(f"s_cmp_ge_u32 s{sW}, {NWIN}"), F("s_cbranch_scc1 L_epi"),
                     F(f"s_cmp_eq_u32 s{sWAVE}, 3"), F("s_cbranch_scc1 L_tailL")]
        B["tail"], _ = schedule(g.tail_main(), g.lds_lat, verbose=True, name="tail")
        tl, _ = schedule(g.tail_L(), g.lds_lat, verbose=True, name="tailL")
        B["tailL"] = [F("L_tailL:")] + tl
        B["epi"] = [F("L_epi:")] + g.deferred(paced=False)
        B["rot"] = g.rot()
        paths = []
        for pre in pres:
            mid = pre + ["body", "body", "body", "disp", "rot", "body", "disp"]
            paths += [mid + ["tail"], mid + ["tailL"], mid + ["epi"]]
        B = insert_waits(B, paths)
        B, nn = fix_hazards(B, paths)
        T = {b: [c.txt for c in B[b]] for b in B}
        if g.diag: g.add_diag(T, cmp_)
        o = [f".globl {KN}", ".p2align 8", f".type {KN},@function", f"{KN}:"]
        for b in order + ["body", "disp", "tail"]: o += T[b]
        o += ["s_endpgm"] + T["tailL"] + ["s_endpgm"] + T["rot"] + g.extra_text(T) if False else ["s_endpgm"] + T["tailL"] + ["s_endpgm"] + T["rot"]
        for b in T:
            if b.startswith("x_"): o += T[b]
        o += T["epi"] + ["L_end:", "s_endpgm"]
        return o
    def add_diag(g, T, cmp_):
        T["p0"].insert(2, f"s_memtime s[{SD}:{SD+1}]"); T["p0"].insert(3, "s_memrealtime s[76:77]")
        if "p1" in T:
            T["p1"].insert(T["p1"].index("s_barrier") + 1, f"s_memtime s[{SD+2}:{SD+3}]")
            T["p1"].append(f"s_memtime s[{SD+4}:{SD+5}]")
        else:
            T["p0"].append(f"s_memtime s[{SD+2}:{SD+3}]"); T["p0"].append(f"s_memtime s[{SD+4}:{SD+5}]")
        for b, marks in (("b0", g.diag[0]), ("body", g.diag[1]), ("tail", g.diag[2])):
            nb = []; m = 0; k = 3
            for t in T[b]:
                if t.startswith("v_mfma"):
                    if m in marks: nb.append(f"s_memtime s[{SD+2*k}:{SD+1+2*k}]"); k += 1
                    m += 1
                if t == cmp_.txt and b == "body": nb += g.stamp_out(k)
                nb.append(t)
            if b == "tail": nb.append(f"s_add_u32 s{sN}, s{sN}, 1")
            if b != "body": nb += g.stamp_out(k)
            assert k < 14
            T[b] = nb

def build4(path, **kw):
    g = Gen4(**kw)
    hdr = open("standalone__swin_window_attn__vision.s.ref").read().split("\n")[:7]
    o = hdr + [f"; @launch kernel={PN} grid=(144,1,1) block=(64,1,1) lds=0",
               f"; @launch kernel={KN} grid=(256,1,1) block=(256,1,1) lds=163840",
               '.amdgcn_target "amdgcn-amd-amdhsa--gfx950"', ".text"]
    pk = prep_kernel2()
    if g.warmp:
        i0 = pk.index("s_cbranch_scc1 LP_end") + 1
        pk[i0:i0] = ["s_getpc_b64 s[34:35]", "LP_pc:", f"s_sub_u32 s34, s34, LP_pc-{KN}", "s_subb_u32 s35, s35, 0",
                     "s_lshr_b32 s36, s2, 3", "s_lshl_b32 s36, s36, 12", "v_lshlrev_b32 v120, 6, v0", "v_add_u32 v120, s36, v120",
                     f"v_min_u32 v120, L_end-{KN}, v120", "global_load_dword v121, v120, s[34:35]"]
    o += g.main_kernel() + pk
    o += ['.section .rodata,"a"'] + kd(KN, 512, 256, 100) + kd(PN, 136, 136, 40)
    open(path, "w").write("\n".join(o) + "\n")

if __name__ == "__main__":
    kw = eval("dict(" + (sys.argv[2] if len(sys.argv) > 2 else "") + ")")
    build4(sys.argv[1], **kw)
```

```python
import sys
from gen import *

sRB = 42; sRB2 = 43; sWn = 33
vX0 = vS
SD = 48

def GDm(tok):
    return I(f"buffer_load_dwordx4 v{vWB[0]}, s[{sWS}:{sWS+3}], m0 offen lds", "GD",
             rd=[f"v{vWB[0]}", "m0"] + regs("s", sWS, 4), wr=[tok])

class Gen2(Gen):
    def __init__(g, ring=12, ntl="nt", nts="", lds_lat=36, tr_nb=500, diag=None, ld0=0, ldstep=14, st0=8, ststep=7,
                 c1=6, wstep=8, tail=False, mlast=14, pro='I', lord='m', trip=1):
        g.pro = pro; g.trip = trip
        g.lo = list(range(18)) if lord == 'm' else [2*(3*m + (h >> 1)) + (h & 1) for h in range(6) for m in range(3)]
        Gen.__init__(g, ring, ntl, nts, lds_lat, tr_nb, diag)
        g.ld0 = ld0; g.ldstep = ldstep; g.st0 = st0; g.ststep = ststep; g.c1 = c1; g.wstep = wstep; g.tail = tail; g.mlast = mlast
        g.seq = list(range(72)) + [72 + ai*6 + st for ai in range(8) for st in range(6)] + \
                [72 + (8+k)*6 + st for st in range(6) for k in range(4)]
    def rd(g, k, first, dl=None):
        f = g.seq[k % 144]
        b, o = frag_lds(f)
        i = DSR(g.slot(k), b, o, ["Wrdy"] if (first and 72 <= k < 144) else [], dl=dl)
        return i
    def dma_piece(g, half, k):
        o = []
        src, kk = (sRB, k) if k < 16 else (sRB2, k - 16)
        if half == 0: o.append(SA("s_xor_b32", "m0", s(src), kk << 12))
        else:
            o.append(SA("s_xor_b32", s(sK), s(src), kk << 12)); o.append(SA("s_add_u32", "m0", s(sK), 73728))
        o.append(GDm(f"Wd{half}_{k}"))
        return o
    def transp_from(g, u, src, dl_r=None):
        m, t = divmod(u, 3)
        L = f"L{u & 1}"; off = (u & 1)*2048
        f, b = src
        dw2 = getattr(g, "dw2", 0)
        if dw2 == 1:
            o = list([I(f"ds_write_b64 v{vSW[x]}, {rt(f, b + 8*u + 4*x + 2*y, 2)} offset:{off + 8*y}", "DW2",
                       rd=[f"v{vSW[x]}"] + regs(f, b + 8*u + 4*x + 2*y, 2), wr=[L + "abcd"[2*x+y]]) for x in range(2) for y in range(2)])
            for h in range(2):
                d = aFRAG + 4*(6*t+2*m+h)
                o.append(I(f"ds_read_b128 {rt('a', d, 4)}, v{vSR[h]} offset:{off}", "DR", rd=[f"v{vSR[h]}"] + [L+c for c in "abcd"], wr=regs("a", d, 4), dl=dl_r))
            return o
        o = [DSW(vSW[0], (f, b + 8*u, 4), off, [L+"a"]), DSW(vSW[1], (f, b + 8*u + 4, 4), off, [L+"b"])]
        for h in range(2):
            d = aFRAG + 4*(6*t+2*m+h)
            o.append(I(f"ds_read_b128 {rt('a', d, 4)}, v{vSR[h]} offset:{off}", "DR", rd=[f"v{vSR[h]}", L+"a", L+"b"], wr=regs("a", d, 4), dl=dl_r))
        return o
    def xload(g, k, sb, dst=("a", aRAW), srd=sXP):
        k = g.lo[k]
        u, b = divmod(k, 2); m, t = divmod(u, 3)
        return GL((dst[0], dst[1] + 4*k, 4), vLA[2*t+b], srd, s(sb), 128*m, g.ntl)

    def next_window(g):
        o = [SA("s_mov_b32", s(sB[0]), s(sBn), scc_w=False), SA("s_add_u32", s(sN), s(sN), 1), SA("s_mov_b32", s(sW), s(sWn), scc_w=False),
             SA("s_add_u32", s(sWn), s(sWn), 1024)]
        if g.tail:
            o += [SA("s_add_u32", s(sT[3]), s(2), 5120), SCMP("s_cmp_eq_u32", s(sN), 4), SA("s_cselect_b32", s(sWn), s(sT[3]), s(sWn), scc_w=False, scc_r=True)]
        o += g.winbase(sBn, sWn)
        o.append(SCMP("s_cmp_lt_u32", s(sWn), NWIN))
        o.append(SA("s_cselect_b32", s(sXP+2), XB, 0, scc_w=False, scc_r=True))
        o += g.masks()
        return o

    def body(g, first):
        o = []; R = g.ring
        nm = [0]
        def M(*x): nm[0] += 1; o.append(MF(*x))
        NT = 4 if first else 3
        tot = 624 + (144 if first else 0)
        o += [SA("s_add_u32", s(sB[r]), s(sB[0]), r*ROW) for r in range(1, 4)]
        if first:
            for k in range(18):
                p = g.dma_piece(1, k)
                for i in p: i.nb = g.wstep*k
                o += p
            for j, k in enumerate(range(g.c1, 18)):
                i = g.xload(k, sBn); i.nb = g.wstep//2 + g.wstep*(j - j % g.trip); o.append(i)
            bar = I("s_barrier", "B", rd=[f"Wd1_{k}" for k in range(18)], wr=["Wrdy"]); bar.nb = 4*(72-R) - 10
            o.append(bar)
        else:
            for k in range(18):
                i = g.xload(k, sBn); i.nb = g.ld0 + g.ldstep*(k - k % g.trip); o.append(i)
        def sph(q):
            for i in g.s_phase(q): o.append(i); nm[0] += 1
            o.extend(g.softmax(q))
        if not first: sph(3)
        kk = [0]
        def nxt():
            k = kk[0] + R
            o.append(g.rd(k, first, dl=(-40 + k - 144) if k >= 144 else None)); kk[0] += 1
        for j in range(6):
            def acc(b, t): return vTACC + 24*(j & 1) + 12*b + 4*t if t < 3 else vU + 8*(2*(j & 1) + b) + 4
            for st in range(6):
                for b in range(2):
                    for t in range(NT):
                        d = v(acc(b, t), 4)
                        M(d, g.slot(kk[0]), X(t, st), d if st else None)
                    nxt()
            for t in range(3):
                dst = TPK(t, j)[1]
                for b in range(2):
                    o.append(VA("v_cvt_pk_bf16_f32", v(dst+2*b), v(acc(b, t)), v(acc(b, t)+1)))
                    o.append(VA("v_cvt_pk_bf16_f32", v(dst+2*b+1), v(acc(b, t)+2), v(acc(b, t)+3)))
            if first:
                for b in range(2):
                    for hh in range(2):
                        tmp = vSPARE + 4*(j & 1) + 2*b + hh
                        o.append(VA("v_cvt_pk_bf16_f32", v(tmp), v(acc(b, 3)+2*hh), v(acc(b, 3)+2*hh+1)))
                        o.append(VA("v_accvgpr_write_b32", a(aTL + 4*j + 2*b + hh), v(tmp)))
        if first: sph(3)
        for q in range(3): sph(q)
        poolA = [vSPARE + 2*i for i in range(6)] + [vTPK + 2*i for i in range(4)] + [Sreg(3, 1), Sreg(3, 1)+2, Sreg(3, 3), Sreg(3, 3)+2]
        poolB = [Sreg(q, kt) + 2*h for q in range(3) for kt in (1, 3) for h in range(2)] + poolA[:2]
        def ucvt(ai, accb):
            if first: o.append(VA("v_cvt_pk_bf16_f32", v(vU + 8*ai + 6), v(vU + 8*ai + 4), v(vU + 8*ai + 5)))
            for t in range(3):
                o.append(VA("v_cvt_pk_bf16_f32", v(vU + 8*ai + 2*t), v(accb+4*t), v(accb+4*t+1)))
                o.append(VA("v_cvt_pk_bf16_f32", v(vU + 8*ai + 2*t + 1), v(accb+4*t+2), v(accb+4*t+3)))
        def umf(ai, st, accb):
            for t in range(NT):
                d = v(accb + 4*t, 4) if t < 3 else v(vU + 8*ai + 4, 4)
                M(d, X(t, st), g.slot(kk[0]), d if st else None)
            nxt()
        for gr in range(3):
            if gr < 2:
                for k in range(4):
                    accb = vTACC + (24 if k & 1 else 36)
                    for st in range(6): umf(4*gr+k, st, accb)
                    ucvt(4*gr+k, accb)
            else:
                ab = [vTACC+36, vTACC, vTACC+12, vTACC+24]
                for st in range(6):
                    for k in range(4):
                        umf(8+k, st, ab[k])
                        if st == 5: ucvt(8+k, ab[k])
                for u in range(9):
                    tr = g.transp_from(u, ("a", aRAW), dl_r=-60 + 4*u)
                    for w_ in tr[:-2]: w_.nb = g.tr_nb + (tot - 624)
                    o += tr
            pool = poolB if gr == 1 else (poolA if gr == 0 else poolA[2:] + poolA[:2])
            pi = 0; m0_ = nm[0]
            for qi, q in enumerate(QORD()):
                ob = vTACC + 16*(qi & 1)
                for ks in range(2):
                    for k in range(4):
                        d = v(ob + 4*k, 4)
                        M(d, v(Sreg(q, 2*ks), 4), v(vU + 8*(4*gr+k) + 4*ks, 4), d if ks else None)
                for r in range(2 if q == 3 else 4):
                    op = pool[pi]
                    for k in range(2):
                        o.append(VA("v_cvt_pk_bf16_f32", v(op+k), v(ob + 8*k + r), v(ob + 8*k + 4 + r)))
                    if q == 3: ad, sb, im = vLS[r], sB[0], 0
                    elif q == 0: ad, sb, im = vSA[0], sB[0], 384*r
                    elif q == 1: ad, sb, im = vSA[1], sB[r], 0
                    else: ad, sb, im = vSA[2], sB[r >> 1], 384*(r & 1)
                    i = GS(v(op, 2), ad, sO, s(sb), im + 128*gr, g.nts)
                    if gr < 2: i.nb = m0_ + g.st0 + g.ststep*pi
                    o.append(i); pi += 1
        assert nm[0] == tot and kk[0] == 144
        o += g.next_window()
        return o

    def prologue(g):
        o = []; A = o.append
        A(F("s_cmp_ge_u32 s2, 256")); A(F("s_cbranch_scc1 L_end"))
        A(F("s_load_dwordx2 s[4:5], s[0:1], 0")); A(F("s_load_dwordx2 s[6:7], s[0:1], 24")); A(F("s_load_dwordx2 s[24:25], s[0:1], 40"))
        T = [vTACC+k for k in range(16)]
        A(VA("v_lshrrev_b32", v(T[0]), 6, v(0)))
        A(VA("v_and_b32", v(0), 63, v(0)))
        A(VA("v_readfirstlane_b32", s(sWAVE), v(T[0])))
        vi, vg = T[1], T[2]
        A(VA("v_and_b32", v(vi), 15, v(0))); A(VA("v_lshrrev_b32", v(vg), 4, v(0)))
        A(VA("v_lshlrev_b32", v(vWB[0]), 4, v(0)))
        A(SA("s_lshl_b32", s(sGW), s(2), 2)); A(SA("s_add_u32", s(sGW), s(sGW), s(sWAVE)))
        A(VA("v_lshrrev_b32", v(T[4]), 5, v(0)))
        A(VA("v_bfe_u32", v(T[5]), v(0), 3, 2))
        A(VA("v_and_b32", v(T[6]), 7, v(0))); A(VA("v_lshlrev_b32", v(T[6]), 4, v(T[6])))
        A(SA("s_mov_b32", s(sK), ROW, scc_w=False)); A(SA("s_movk_i32", s(sM0), 384, scc_w=False))
        def origin(dst, t, vsh):
            A(SA("s_mov_b32", s(sT[0]), lut(t), scc_w=False))
            A(VA("v_lshrrev_b32", v(T[8]), v(vsh), s(sT[0])))
            A(VA("v_bfe_u32", v(T[9]), v(T[8]), 3, 3)); A(VA("v_and_b32", v(T[8]), 7, v(T[8])))
            A(VA("v_mul_u32_u24", v(T[9]), ROW, v(T[9])))
            A(VA("v_mad_u32_u24", v(dst), v(T[8]), s(sM0), v(T[9])))
        A(VA("v_mad_u32_u24", v(T[10]), v(T[5]), s(sM0), v(T[6])))
        A(VA("v_mad_u32_u24", v(T[11]), v(T[5]), s(sK), v(T[6])))
        A(VA("v_lshrrev_b32", v(T[12]), 1, v(T[5]))); A(VA("v_mad_u32_u24", v(T[12]), v(T[12]), s(sK), v(T[6])))
        A(VA("v_and_b32", v(T[13]), 1, v(T[5]))); A(VA("v_mad_u32_u24", v(T[12]), v(T[13]), s(sM0), v(T[12])))
        for b in range(2):
            A(VA("v_lshlrev_b32", v(T[7]), 3, v(T[4])))
            if b: A(VA("v_add_u32", v(T[7]), 16, v(T[7])))
            for t in range(3):
                origin(vLA[2*t+b], t, T[7])
                A(VA("v_add_u32", v(vLA[2*t+b]), v(vLA[2*t+b]), v(T[10+t])))
        if getattr(g, "patA", 0):
            A(VA("v_and_b32", v(T[5]), 3, v(0))); A(VA("v_lshlrev_b32", v(T[6]), 4, v(vg)))
            A(VA("v_mad_u32_u24", v(T[10]), v(T[5]), s(sM0), v(T[6])))
            A(VA("v_mad_u32_u24", v(T[11]), v(T[5]), s(sK), v(T[6])))
            A(VA("v_lshrrev_b32", v(T[12]), 1, v(T[5]))); A(VA("v_mad_u32_u24", v(T[12]), v(T[12]), s(sK), v(T[6])))
            A(VA("v_and_b32", v(T[13]), 1, v(T[5]))); A(VA("v_mad_u32_u24", v(T[12]), v(T[13]), s(sM0), v(T[12])))
            A(VA("v_lshrrev_b32", v(T[7]), 2, v(vi))); A(VA("v_lshlrev_b32", v(T[7]), 3, v(T[7])))
            for t in range(3):
                origin(vLA[2*t], t, T[7])
                A(VA("v_add_u32", v(vLA[2*t]), v(vLA[2*t]), v(T[10+t])))
        A(SA("s_mov_b32", s(sW), s(sGW), scc_w=False)); A(SA("s_mov_b32", s(sN), 0, scc_w=False))
        o += g.winbase(sB[0], sW)
        A(SA("s_lshr_b32", s(sRB), s(2), 3)); A(SA("s_and_b32", s(sRB), s(sRB), 15)); A(SA("s_lshl_b32", s(sRB), s(sRB), 12))
        A(SA("s_lshl_b32", s(sT[0]), s(sWAVE), 10)); A(SA("s_add_u32", s(sRB), s(sRB), s(sT[0])))
        A(SA("s_and_b32", s(sRB2), s(sRB), "0x1fff")); A(SA("s_add_u32", s(sRB2), s(sRB2), "0x10000"))
        A(F("s_waitcnt lgkmcnt(0)", wr=["s4", "s5", "s6", "s7", "s24", "s25"]))
        def srd(srd, lo, sz):
            A(SA("s_mov_b32", s(srd), s(lo), scc_w=False)); A(SA("s_mov_b32", s(srd+1), s(lo+1), scc_w=False))
            A(SA("s_mov_b32", s(srd+2), sz, scc_w=False)); A(SA("s_mov_b32", s(srd+3), "0x20000", scc_w=False))
        srd(sXP, 4, XB); srd(sWS, 24, WSB)
        f = []; A = f.append
        A(VA("v_lshrrev_b32", v(T[4]), 2, v(vi))); A(VA("v_lshlrev_b32", v(T[4]), 1, v(T[4])))
        A(VA("v_and_b32", v(T[5]), 1, v(vi))); A(VA("v_add_u32", v(T[4]), v(T[4]), v(T[5])))
        if g.tail:
            A(SA("s_sub_u32", s(sT[1]), s(2), s(sGW)))
            A(VA("v_cmp_eq_u32", "vcc", 5, v(T[4]))); A(VA("v_mov_b32", v(T[5]), s(sT[1]))); A(VA("v_cndmask_b32", v(T[5]), 0, v(T[5]), "vcc"))
        A(VA("v_lshlrev_b32", v(T[4]), 10, v(T[4]))); A(VA("v_add_u32", v(T[4]), s(sGW), v(T[4])))
        if g.tail: A(VA("v_add_u32", v(T[4]), v(T[4]), v(T[5])))
        A(SA("s_mov_b32", s(sT[0]), 58835169, scc_w=False))
        A(VA("v_mul_hi_u32", v(T[5]), v(T[4]), s(sT[0])))
        A(VA("v_mul_u32_u24", v(T[6]), 73, v(T[5]))); A(VA("v_sub_u32", v(T[6]), v(T[4]), v(T[6])))
        A(VA("v_mul_u32_u24", v(T[5]), 7*ROW, v(T[5]))); A(VA("v_mul_u32_u24", v(T[6]), 7*384, v(T[6])))
        A(VA("v_add_u32", v(T[3]), v(T[5]), v(T[6])))
        A(VA("v_lshlrev_b32", v(T[5]), 4, v(vg))); A(VA("v_add_u32", v(T[3]), v(T[3]), v(T[5])))
        A(VA("v_add_u32", v(T[3]), CENTER, v(T[3])))
        A(VA("v_mov_b32", v(vOOB), "0x80000000")); A(VA("v_mov_b32", v(vNINF), "0xff800000"))
        A(VA("v_and_b32", v(T[5]), 2, v(vi))); A(VA("v_lshlrev_b32", v(T[5]), 14, v(T[5])))
        A(VA("v_add_u32", v(T[4]), v(T[4]), v(T[5])))
        A(VA("v_cmp_gt_u32", "vcc", NWIN, v(T[4])))
        A(VA("v_cndmask_b32", v(T[3]), v(vOOB), v(T[3]), "vcc"))
        for st in range(6): A(GL(a(aXL + 4*st, 4), T[3], sXP, 0, 64*st))
        f1 = f; f = []; A = f.append
        srd(sO, 6, XB)
        A(VA("v_lshlrev_b32", v(T[7]), 3, v(vg)))
        A(VA("v_lshlrev_b32", v(T[14]), 3, v(vi)))
        for t in range(3):
            origin(vSA[t], t, T[7])
            A(VA("v_add_u32", v(vSA[t]), v(vSA[t]), v(T[14])))
        A(VA("v_add_u32", v(vLSb), CENTER, v(T[14])))
        A(VA("v_lshlrev_b32", v(vG2), 1, v(vg)))
        A(VA("v_add_u32", v(vWB[1]), "0x10000", v(vWB[0]))); A(VA("v_add_u32", v(vWB[2]), "0x20000", v(vWB[0])))
        A(VA("v_mov_b32", v(vBIAS+2), 0)); A(VA("v_mov_b32", v(vBIAS+3), 0))
        A(SA("s_lshl_b32", s(sT[0]), s(sWAVE), 12)); A(SA("s_add_u32", s(sT[0]), s(sT[0]), WSB))
        A(VA("v_and_b32", v(T[8]), 7, v(0))); A(VA("v_xor_b32", v(T[8]), v(T[8]), v(vg))); A(VA("v_lshlrev_b32", v(T[8]), 4, v(T[8])))
        A(VA("v_lshrrev_b32", v(T[9]), 3, v(0))); A(VA("v_lshlrev_b32", v(T[9]), 7, v(T[9])))
        A(VA("v_add3_u32", v(vSW[0]), v(T[8]), v(T[9]), s(sT[0])))
        A(VA("v_xor_b32", v(vSW[1]), 64, v(vSW[0]))); A(VA("v_add_u32", v(vSW[1]), "0x400", v(vSW[1])))
        A(VA("v_lshrrev_b32", v(T[8]), 1, v(vi))); A(VA("v_xor_b32", v(T[8]), v(T[8]), v(vg))); A(VA("v_lshlrev_b32", v(T[8]), 4, v(T[8])))
        A(VA("v_lshlrev_b32", v(T[9]), 7, v(vi)))
        A(VA("v_add3_u32", v(vSR[0]), v(T[8]), v(T[9]), s(sT[0])))
        A(VA("v_xor_b32", v(vSR[1]), 64, v(vSR[0])))
        A(SA("s_add_u32", s(sWn), s(sW), 1024))
        f += g.winbase(sBn, sWn)
        f += g.masks()
        f2 = f
        def seq_I():
            o = []; mk = 0
            for k in range(18):
                o.append(g.xload(k, sB[0], dst=("v", vX0)))
                want = min(18, -(-(k+1)*18 // g.mlast))
                while mk < want: o += g.dma_piece(0, mk); mk += 1
                if k == 3: o += f1
                if k == 7: o += f2
            return o
        def seq_MX():
            o = []
            for k in range(18):
                o += g.dma_piece(0, k)
                if k == 3: o += f1
                if k == 7: o += f2
            for k in range(18): o.append(g.xload(k, sB[0], dst=("v", vX0)))
            return o
        def seq_XM():
            o = []
            for k in range(18):
                o.append(g.xload(k, sB[0], dst=("v", vX0)))
                if k == 3: o += f1
                if k == 7: o += f2
            for k in range(18): o += g.dma_piece(0, k)
            return o
        def p1(ub):
            o = []
            for u in range(10):
                if u == ub:
                    o.append(I("s_barrier", "B", rd=[f"Wd0_{k}" for k in range(18)]))
                    for k in range(g.ring): o.append(g.rd(k, True))
                if u < 9: o += g.transp_from(u, ("v", vX0))
            return o
        if g.pro == "MX3":
            f1a, f1b = f1[:-6], f1[-6:]
            xl = g.xlpos; n1 = g.n1
            for k in range(18): o += g.dma_piece(0, k)
            if g.bar1: o.append(I("s_barrier", "B"))
            for k in range(n1):
                o.append(g.xload(k, sB[0]))
                if k == 5: o += f1a + f2
                if xl == k + 1: o += f1b
            q = [I("s_barrier", "B", rd=[f"Wd0_{k}" for k in range(18)])] + [g.rd(k, True) for k in range(g.ring)]
            for k in range(n1, 18):
                q.append(g.xload(k, sB[0]))
                if xl == k + 1: q += f1b
            for m in range(3): q += g.transp_from(3*m, ("a", aRAW))
            return dict(p0=o, p1=q)
        x1 = [g.xload(k, sBn) for k in range(g.c1)]
        if g.pro == "I": return dict(p0=o + seq_I() + x1, p1=p1(min(9, (g.mlast + 1)//2)))
        if g.pro == "MX": return dict(p0=o + seq_MX() + x1, p1=p1(0))
        if g.pro == "XM": return dict(p0=o + seq_XM() + x1, p1=p1(9))
        o += [F(f"s_bitcmp1_b32 s2, {g.pro[2:] or 3}"), F("s_cbranch_scc1 L_xm")]
        return dict(p0=o, p1=seq_MX() + x1 + p1(0) + [F("s_branch L_b0")], p1b=[F("L_xm:")] + seq_XM() + x1 + p1(9) + [F("L_b0:")])

    def stamp_out(g, k):
        nb = [f"s_memtime s[{SD+2*k}:{SD+1+2*k}]", "s_memrealtime s[78:79]", "s_waitcnt lgkmcnt(0)"]
        for i in range(14): nb.append(f"v_writelane_b32 v{vTMP}, s{SD+2*i}, {i}")
        nb.append(f"v_writelane_b32 v{vTMP}, s76, 14"); nb.append(f"v_writelane_b32 v{vTMP}, s78, 15")
        nb += ["s_mov_b32 s80, s24", "s_mov_b32 s81, s25", "s_mov_b32 s82, 0x10000000", "s_mov_b32 s83, 0x20000",
               f"s_mul_i32 s84, s{sGW}, 6", f"s_add_u32 s84, s84, s{sN}", "s_sub_u32 s84, s84, 1", "s_lshl_b32 s84, s84, 8", "s_add_u32 s84, s84, 0x40000",
               "s_mov_b64 exec, 0xffff", f"buffer_store_dword v{vTMP}, v{vWB[0]}, s[80:83], s84 offen", "s_mov_b64 exec, -1"]
        return nb

    def main_kernel(g):
        assert 144 % g.ring == 0
        B = g.prologue()
        B["b0"], _ = schedule(g.body(True), g.lds_lat, verbose=True, name="b0")
        body, _ = schedule(g.body(False), g.lds_lat, verbose=True, name="body")
        cmp_ = F(f"s_cmp_lt_u32 s{sW}, {NWIN}", rd=[f"s{sW}"])
        B["body"] = [F(".p2align 6"), F("L_loop:")] + body + [cmp_, F("s_cbranch_scc1 L_loop")]
        order = ["p0", "p1", "b0", "body"]
        paths = [order + ["body", "body"]]
        if "p1b" in B:
            order = ["p0", "p1", "p1b", "b0", "body"]
            paths.append(["p0", "p1b", "b0", "body", "body", "body"])
        B = insert_waits(B, paths)
        B, nn = fix_hazards(B, paths)
        T = {b: [c.txt for c in B[b]] for b in B}
        if g.diag:
            T["p0"].insert(2, f"s_memtime s[{SD}:{SD+1}]"); T["p0"].insert(3, "s_memrealtime s[76:77]")
            T["p0"].append(f"s_memtime s[{SD+2}:{SD+3}]")
            T["p1b" if "p1b" in T else "p1"].append(f"s_memtime s[{SD+4}:{SD+5}]")
            for b, marks in (("b0", g.diag[0]), ("body", g.diag[1])):
                nb = []; m = 0; k = 3
                for t in T[b]:
                    if t.startswith("v_mfma"):
                        if m in marks: nb.append(f"s_memtime s[{SD+2*k}:{SD+1+2*k}]"); k += 1
                        m += 1
                    if t == cmp_.txt and b == "body": nb += g.stamp_out(k)
                    nb.append(t)
                if b == "b0": nb += g.stamp_out(k)
                assert k < 14
                T[b] = nb
        o = [f".globl {KN}", ".p2align 8", f".type {KN},@function", f"{KN}:"]
        for b in order: o += T[b]
        o += ["L_end:", "s_endpgm"]
        return o

def prep_kernel2():
    o = prep_kernel()
    i0 = o.index("s_cmp_ge_u32 s28, 6")
    assert o[i0+1:i0+5] == ["s_cselect_b32 s32, 90, 0", "s_add_u32 s32, s32, s28", "s_lshl_b32 s32, s32, 1", "v_mul_u32_u24 v6, 12, v1"]
    o[i0:i0+5] = ["s_lshr_b32 s32, s28, 2", "s_lshl_b32 s32, s32, 6", "s_and_b32 s33, s28, 3", "s_add_u32 s32, s32, s33", "s_lshl_b32 s32, s32, 1",
                  "v_lshlrev_b32 v6, 3, v1"]
    return o

def build2(path, **kw):
    g = Gen2(**kw)
    hdr = open("standalone__swin_window_attn__vision.s.ref").read().split("\n")[:7]
    o = hdr + [f"; @launch kernel={PN} grid=(144,1,1) block=(64,1,1) lds=0",
               f"; @launch kernel={KN} grid=(256,1,1) block=(256,1,1) lds=163840",
               '.amdgcn_target "amdgcn-amd-amdhsa--gfx950"', ".text"]
    o += g.main_kernel() + prep_kernel2()
    o += ['.section .rodata,"a"'] + kd(KN, 512, 256, 96) + kd(PN, 136, 136, 40)
    open(path, "w").write("\n".join(o) + "\n")

if __name__ == "__main__":
    kw = eval("dict(" + (sys.argv[2] if len(sys.argv) > 2 else "") + ")")
    build2(sys.argv[1], **kw)
```

```python
import sys
from gen2 import *

sBp = [44, 45, 46, 47]
sPC = 88
sPFb = 95
P0 = [Sreg(q, kt) + 2*h for q in range(2) for kt in (1, 3) for h in range(2)] + [vSPARE + 2*i for i in range(6)]
P1 = [vTPK + 2*i for i in range(4)] + [Sreg(q, kt) + 2*h for q in (3, 2) for kt in (1, 3) for h in range(2)] + P0[:2]
P2 = P1[:2] + P0[2:]
NTAIL = NWIN - 5120

class Gen3(Gen2):
    def __init__(g, ds0=0, dstep=5, ld0=60, ldstep=14, st0=8, ststep=5.5, wstep=12, x10=216, x1step=8, tA=24, wbar=350, tr_nb=470, c1=0, xlpos=18, aord=1, n1=12, bar1=1, patA=0, warm=0, warm2=0, warmp=0, w2nb=40, lordS='h', pf=None, pf0=None, pffl='nt', dw2=0, **kw):
        g.dw2 = dw2
        g.lordS = lordS; g.pf = pf; g.pf0 = pf0; g.pffl = pffl
        g.patA = patA; g.warm = warm; g.warm2 = warm2; g.warmp = warmp; g.w2nb = w2nb
        g.xlpos = xlpos; g.aord = aord; g.n1 = n1; g.bar1 = bar1
        Gen2.__init__(g, ld0=ld0, ldstep=ldstep, st0=st0, ststep=ststep, wstep=wstep, lord='h', tail=True, tr_nb=tr_nb, c1=c1, **kw)
        g.ds0 = ds0; g.dstep = dstep; g.x10 = x10; g.x1step = x1step; g.tA = tA; g.wbar = wbar
    def xload(g, k, sb, dst=("a", aRAW), srd=sXP):
        if not g.patA: return Gen2.xload(g, k, sb, dst, srd)
        t, st = divmod(k, 6)
        kk = g.lo[k]
        return GL((dst[0], dst[1] + 4*kk, 4), vLA[2*t], srd, s(sb), 64*st, g.ntl)
    def next_window(g):
        o = Gen2.next_window(g)
        if g.pf:
            o += [SA("s_add_u32", s(sT[3]), s(sW), 2048)] + g.winbase(sPFb, sT[3])
            o += [SCMP("s_cmp_le_u32", s(sN), 2), SA("s_cselect_b32", s(sX+2), XB, 0, scc_w=False, scc_r=True)]
        return o
    def pfl(g, pos):
        o = []
        for k, p in enumerate(pos):
            i = GL(a(240 + k), 0, sX, s(sPFb), 128*k, g.pffl, op="buffer_load_dword"); i.nb = p; i.dl = -10**6; o.append(i)
        return o
    def rdf(g, k, f, toks=(), dl=None):
        b, o = frag_lds(f)
        return DSR(g.slot(k), b, o, list(toks), dl=dl)
    def st_addr(g, q, r, B):
        if q == 3: return vLS[r], B[0], 0
        if q == 0: return vSA[0], B[0], 384*r
        if q == 1: return vSA[1], B[r], 0
        return vSA[2], B[r >> 1], 384*(r & 1)
    def out_cvt(g, ob, op, r):
        return [VA("v_cvt_pk_bf16_f32", v(op+k), v(ob + 8*k + r), v(ob + 8*k + 4 + r)) for k in range(2)]
    def deferred(g, paced=True):
        o = []
        for r in range(4): o += g.out_cvt(vTACC + 16, P2[10+r], r)
        for i in range(12):
            q, r = divmod(i, 4)
            ad, sb, im = g.st_addr(q, r, sBp)
            x = GS(v(P2[2+i], 2), ad, sO, s(sb), im + 256, g.nts)
            if paced: x.nb = g.ds0 + g.dstep*i
            o.append(x)
        return o

    def body(g, first):
        o = []; R = g.ring
        nm = [0]
        def M(*x): nm[0] += 1; o.append(MF(*x))
        NT = 4 if first else 3
        tot = 624 + (144 if first else 0)
        PH = {0: [[3, 0], [1], [2]], 1: [[0], [1], [2, 3]], 2: [[0, 3], [1, 2]], 3: [[0, 1], [2, 3]], 4: [[0, 1, 2, 3]]}[g.aord]
        seq = (list(range(72))*len(PH) if first else list(range(72))) + g.seq[72:]
        nW = len(seq) - 72
        kk = [0]
        def nxt():
            k = kk[0] + R; kk[0] += 1
            if k >= len(seq): o.append(g.rdf(k, k - len(seq), dl=-40 + k - len(seq)))
            else: o.append(g.rdf(k, seq[k], ["Wrdy"] if (first and k >= nW) else []))
        def sph(q):
            for i in g.s_phase(q): o.append(i); nm[0] += 1
            o.extend(g.softmax(q))
        def tphase(tiles):
            n = len(tiles)
            for j in range(6):
                def acc(b, x): return vTACC + 8*n*(j & 1) + 4*n*b + 4*x if n < 4 else (vTACC + 24*(j & 1) + 12*b + 4*x if x < 3 else vU + 8*(2*(j & 1) + b) + 4)
                for st in range(6):
                    for b in range(2):
                        for x, t in enumerate(tiles):
                            d = v(acc(b, x), 4)
                            M(d, g.slot(kk[0]), X(t, st), d if st else None)
                        nxt()
                for x, t in enumerate(tiles):
                    for b in range(2):
                        for hh in range(2):
                            if t < 3:
                                o.append(VA("v_cvt_pk_bf16_f32", v(TPK(t, j)[1]+2*b+hh), v(acc(b, x)+2*hh), v(acc(b, x)+2*hh+1)))
                            else:
                                tmp = vSPARE + 4*(j & 1) + 2*b + hh
                                o.append(VA("v_cvt_pk_bf16_f32", v(tmp), v(acc(b, x)+2*hh), v(acc(b, x)+2*hh+1)))
                                o.append(VA("v_accvgpr_write_b32", a(aTL + 4*j + 2*b + hh), v(tmp)))
        if not first: o += g.deferred()
        if g.pf: o += g.pfl(g.pf0 if first else g.pf)
        o += [SA("s_add_u32", s(sB[r]), s(sB[0]), r*ROW) for r in range(1, 4)]
        if first:
            for k in range(18):
                p = g.dma_piece(1, k)
                for i in p[:-1]: i.nb = g.wstep*k - 4
                p[-1].nb = g.wstep*k
                o += p
            bar = I("s_barrier", "B", rd=[f"Wd1_{k}" for k in range(18)], wr=["Wrdy"]); bar.nb = g.wbar
            o.append(bar)
            ph = PH
            for tl in ph:
                for t in tl:
                    if t in (1, 2) and t not in getattr(g, 'tpre', ()):
                        for m in range(3):
                            tr = g.transp_from(3*m + t, ("a", aRAW))
                            for w_ in tr[:-2]: w_.nb = nm[0] - g.tA
                            o += tr
                tphase(tl)
            for k in range(18):
                i = g.xload(k, sBn); i.nb = g.x10 + g.x1step*(k - k % g.trip); o.append(i)
            sph(3)
        else:
            lo_save = g.lo
            if g.lordS == 'm': g.lo = list(range(18))
            for k in range(18):
                i = g.xload(k, sBn); i.nb = int(g.ld0 + g.ldstep*(k - k % g.trip)); o.append(i)
            g.lo = lo_save
            if g.warm2:
                i = I(f"s_load_dword s{sPC+6}, s[{sPC}:{sPC+1}], 0", "S"); i.nb = g.w2nb; i.dl = -10**6; o.append(i)
            sph(3)
            tphase([0, 1, 2])
        for q in range(3): sph(q)
        def ucvt(ai, accb):
            if first: o.append(VA("v_cvt_pk_bf16_f32", v(vU + 8*ai + 6), v(vU + 8*ai + 4), v(vU + 8*ai + 5)))
            for t in range(3):
                o.append(VA("v_cvt_pk_bf16_f32", v(vU + 8*ai + 2*t), v(accb+4*t), v(accb+4*t+1)))
                o.append(VA("v_cvt_pk_bf16_f32", v(vU + 8*ai + 2*t + 1), v(accb+4*t+2), v(accb+4*t+3)))
        def umf(ai, st, accb):
            for t in range(NT):
                d = v(accb + 4*t, 4) if t < 3 else v(vU + 8*ai + 4, 4)
                M(d, X(t, st), g.slot(kk[0]), d if st else None)
            nxt()
        si = [0]
        def pv(gr, pool, m0_):
            pi = 0
            for qi, q in enumerate(QORD()):
                ob = vTACC + 16*(qi & 1)
                for ks in range(2):
                    for k in range(4):
                        d = v(ob + 4*k, 4)
                        M(d, v(Sreg(q, 2*ks), 4), v(vU + 8*(4*gr+k) + 4*ks, 4), d if ks else None)
                for r in range(2 if q == 3 else 4):
                    op = pool[pi]; pi += 1
                    if gr == 2 and q == 2: continue
                    o.extend(g.out_cvt(ob, op, r))
                    if gr == 2 and q != 3: continue
                    ad, sb, im = g.st_addr(q, r, sB)
                    i = GS(v(op, 2), ad, sO, s(sb), im + 128*gr, g.nts)
                    if gr < 2: i.nb = int(m0_ + g.st0 + g.ststep*si[0]); si[0] += 1
                    o.append(i)
        for ai in range(8):
            accb = vTACC + (24 if ai & 1 else 36)
            for st in range(6): umf(ai, st, accb)
            ucvt(ai, accb)
        m0_ = nm[0]
        pv(0, P0, m0_); pv(1, P1, m0_)
        ab = [vTACC+36, vTACC, vTACC+12, vTACC+24]
        for st in range(6):
            for k in range(4):
                umf(8+k, st, ab[k])
                if st == 5: ucvt(8+k, ab[k])
        for u in range(9):
            tr = g.transp_from(u, ("a", aRAW), dl_r=-60 + 4*u)
            for w_ in tr[:-2]: w_.nb = g.tr_nb + (tot - 624)
            o += tr
        pv(2, P2, None)
        assert nm[0] == tot and kk[0] == len(seq)
        o += [SA("s_mov_b32", s(sBp[r]), s(sB[r]), scc_w=False) for r in range(4)]
        o += g.next_window()
        return o

    def tail_addr(g):
        o = []; A = o.append
        PR = vLA[:4]; PW = [vLA[4], vLA[5], vSW[0], vSW[1]]
        A(VA("v_lshrrev_b32", v(vTMP), 1, v(vWB[0])))
        A(SA("s_lshl_b32", s(sT[3]), s(sWAVE), 12))
        for t in range(4):
            if t < 3:
                A(SA("s_add_u32", s(sT[0]), s(sWAVE), t)); A(SA("s_sub_u32", s(sT[1]), s(sT[0]), 3))
                A(SCMP("s_cmp_ge_u32", s(sT[0]), 3)); A(SA("s_cselect_b32", s(sT[0]), s(sT[1]), s(sT[0]), scc_w=False, scc_r=True))
                A(SA("s_lshl_b32", s(sT[0]), s(sT[0]), 9)); A(SA("s_add_u32", s(sT[0]), s(sT[0]), WSB))
            else: A(SA("s_mov_b32", s(sT[0]), WSB + 1536, scc_w=False))
            A(VA("v_add_u32", v(PR[t]), s(sT[0]), v(vTMP)))
            A(VA("v_add_u32", v(PW[t]), s(sT[3]), v(PR[t])))
        return o, PR, PW
    def p_write(g, q, PW):
        return [I(f"ds_write_b64 v{PW[t]}, {rt('v', Sreg(q, 0) + (0, 2, 8, 10)[t], 2)}", "DW2", rd=[f"v{PW[t]}"] + regs("v", Sreg(q, 0) + (0, 2, 8, 10)[t], 2), wr=[f"Pw{t}"])
                for t in range(4)]
    def tail_main(g):
        o = g.deferred(); R = g.ring
        ad, PR, PW = g.tail_addr(); o += ad
        vWT = vSR[0]
        A = o.append
        A(SA("s_mul_i32", s(sT[0]), s(sWAVE), 24*1024, scc_w=False)); A(SA("s_add_u32", s(sT[0]), s(sT[0]), 72*1024))
        A(VA("v_add_u32", v(vWT), s(sT[0]), v(vWB[0])))
        A(SA("s_lshl_b32", s(sT[0]), s(sWAVE), 7)); A(SA("s_add_u32", s(sB[0]), s(sB[0]), s(sT[0])))
        o += [SA("s_add_u32", s(sB[r]), s(sB[0]), r*ROW) for r in range(1, 4)]
        for w, sm in ((1, 4), (2, 6)):
            A(SCMP("s_cmp_eq_u32", s(sWAVE), w)); A(SA("s_cselect_b64", s(sm, 2), -1, 0, scc_w=False, scc_r=True))
            for k in range(4): A(VA("v_cndmask_b32", v(vU + 8*k + 6), v(vU + 8*k + 6), v(vU + 8*(4*w+k) + 6), s(sm, 2)))
        kk = [0]
        def nxt():
            k = kk[0] + R; kk[0] += 1
            if k < 72: o.append(g.rdf(k, k))
            elif k < 96: o.append(DSR(g.slot(k), vWT, (k-72)*1024, []))
        for j in range(6):
            for st in range(6):
                for b in range(2):
                    d = v(vTACC + 32 + 8*(j & 1) + 4*b, 4)
                    A(MF(d, g.slot(kk[0]), X(0, st), d if st else None)); nxt()
            for b in range(2):
                for hh in range(2):
                    acc = vTACC + 32 + 8*(j & 1) + 4*b + 2*hh
                    A(VA("v_cvt_pk_bf16_f32", v(TPK(0, j)[1]+2*b+hh), v(acc), v(acc+1)))
        o += g.s_phase(0); o += g.softmax(0); o += g.p_write(0, PW)
        A(I("s_barrier", "B", rd=[f"Pw{t}" for t in range(4)], wr=["Prdy"]))
        for q in QORD():
            for t in range(4):
                d = Sreg(q, 0) + (0, 2, 8, 10)[t]
                A(I(f"ds_read_b64 {rt('v', d, 2)}, v{PR[t]} offset:{4096*q}", "DR", rd=[f"v{PR[t]}", "Prdy"], wr=regs("v", d, 2)))
        for k in range(4):
            accb = vTACC + (24 if k & 1 else 36)
            for st in range(6):
                for t in range(3):
                    d = v(accb + 4*t, 4)
                    A(MF(d, X(t, st), g.slot(kk[0]), d if st else None))
                nxt()
            for t in range(3):
                A(VA("v_cvt_pk_bf16_f32", v(vU + 8*k + 2*t), v(accb+4*t), v(accb+4*t+1)))
                A(VA("v_cvt_pk_bf16_f32", v(vU + 8*k + 2*t + 1), v(accb+4*t+2), v(accb+4*t+3)))
        pool = [vU + 32 + 2*i for i in range(14)]; pi = 0
        for qi, q in enumerate(QORD()):
            ob = vTACC + 16*(qi & 1)
            for ks in range(2):
                for k in range(4):
                    d = v(ob + 4*k, 4)
                    A(MF(d, v(Sreg(q, 2*ks), 4), v(vU + 8*k + 4*ks, 4), d if ks else None))
            for r in range(2 if q == 3 else 4):
                op = pool[pi]; pi += 1
                o += g.out_cvt(ob, op, r)
                ad_, sb, im = g.st_addr(q, r, sB)
                A(GS(v(op, 2), ad_, sO, s(sb), im, g.nts))
        return o
    def tail_L(g):
        o = g.deferred(paced=False)
        ad, PR, PW = g.tail_addr(); o += ad
        o += g.s_phase(3); o += g.softmax(3); o += g.p_write(3, PW)
        o.append(I("s_barrier", "B", rd=[f"Pw{t}" for t in range(4)], wr=["Prdy"]))
        return o

    def prologue(g):
        g.pro = "MX3"
        B = Gen2.prologue(g)
        if g.pf:
            T = [vTACC+k for k in range(16)]
            q = [VA("v_mul_u32_u24", v(T[4]), 37, v(0)), VA("v_lshrrev_b32", v(T[4]), 8, v(T[4])),
                 VA("v_mul_u32_u24", v(T[5]), ROW - 7*384, v(T[4])), VA("v_mul_u32_u24", v(T[6]), 384, v(0)), VA("v_add_u32", v(T[5]), v(T[5]), v(T[6])),
                 VA("v_cmp_gt_u32", "vcc", 49, v(0)), VA("v_cndmask_b32", v(0), v(vOOB), v(T[5]), "vcc"),
                 SA("s_add_u32", s(sT[3]), s(sW), 2048)] + g.winbase(sPFb, sT[3])
            q += [SA("s_mov_b32", s(sX), s(4), scc_w=False), SA("s_mov_b32", s(sX+1), s(5), scc_w=False), SA("s_mov_b32", s(sX+2), XB, scc_w=False), SA("s_mov_b32", s(sX+3), "0x20000", scc_w=False)]
            B["p0"] += q
        if g.warm or g.warm2:
            p = B["p0"]
            i0 = [k for k, c in enumerate(p) if c.txt.startswith("s_waitcnt lgkmcnt(0)")][0] + 1
            w = [F(f"s_getpc_b64 s[{sPC}:{sPC+1}]"), F(f"s_and_b32 s{sPC}, s{sPC}, 0xffffff00"),
                 F(f"s_lshr_b32 s{sPC+2}, s2, 3"), F(f"s_lshl_b32 s{sPC+2}, s{sPC+2}, 2"), F(f"s_add_u32 s{sPC+2}, s{sPC+2}, s{sWAVE}")]
            pre = w
            w = []
            if g.warm:
                w += [F(f"s_mul_i32 s{sPC+3}, s{sPC+2}, {64*g.warm}"), F(f"s_min_u32 s{sPC+3}, s{sPC+3}, L_end-{KN}-{64*g.warm}+64"),
                      F(f"s_add_u32 s{sPC+4}, s{sPC}, s{sPC+3}"), F(f"s_addc_u32 s{sPC+5}, s{sPC+1}, 0")]
                w += [F(f"s_load_dword s{sPC+6}, s[{sPC+4}:{sPC+5}], {64*k}") for k in range(g.warm)]
            if g.warm2:
                w += [F(f"s_lshl_b32 s{sPC+3}, s{sPC+2}, 6"), F(f"s_min_u32 s{sPC+3}, s{sPC+3}, L_end-L_disp"),
                      F(f"s_add_u32 s{sPC+3}, s{sPC+3}, L_disp-{KN}"),
                      F(f"s_add_u32 s{sPC}, s{sPC}, s{sPC+3}"), F(f"s_addc_u32 s{sPC+1}, s{sPC+1}, 0")]
            p[2:2] = pre[:2]
            i0 += 2
            i1 = max(k for k, c in enumerate(p) if c.k == "GD") + 1
            p[i1:i1] = pre[2:] + w
        return B

    def main_kernel(g):
        assert 144 % g.ring == 0
        B = g.prologue()
        B["b0"], _ = schedule(g.body(True), g.lds_lat, verbose=True, name="b0")
        body, _ = schedule(g.body(False), g.lds_lat, verbose=True, name="body")
        cmp_ = F(f"s_cmp_lt_u32 s{sN}, 4", rd=[f"s{sN}"])
        B["body"] = [F(".p2align 6"), F("L_loop:")] + body + [cmp_, F("s_cbranch_scc1 L_loop")]
        B["disp"] = [F("L_disp:"), F(f"s_cmp_eq_u32 s{sN}, 4"), F("s_cbranch_scc1 L_rot"), F(f"s_cmp_ge_u32 s2, {NTAIL}"), F("s_cbranch_scc1 L_epi"),
                     F(f"s_cmp_eq_u32 s{sWAVE}, 3"), F("s_cbranch_scc1 L_tailL")]
        B["tail"], _ = schedule(g.tail_main(), g.lds_lat, verbose=True, name="tail")
        tl, _ = schedule(g.tail_L(), g.lds_lat, verbose=True, name="tailL")
        B["tailL"] = [F("L_tailL:")] + tl
        B["epi"] = [F("L_epi:")] + g.deferred(paced=False)
        rot = ["L_rot:", f"s_cmp_eq_u32 s{sWAVE}, 1", "s_cbranch_scc1 L_r1", f"s_cmp_eq_u32 s{sWAVE}, 2", "s_cbranch_scc0 L_loop"]
        for b in range(2): rot += [f"v_mov_b32 v{vTMP}, v{vLA[4+b]}", f"v_mov_b32 v{vLA[4+b]}, v{vLA[2+b]}", f"v_mov_b32 v{vLA[2+b]}, v{vLA[b]}", f"v_mov_b32 v{vLA[b]}, v{vTMP}"]
        rot += ["s_branch L_loop", "L_r1:"]
        for b in range(2): rot += [f"v_mov_b32 v{vTMP}, v{vLA[b]}", f"v_mov_b32 v{vLA[b]}, v{vLA[2+b]}", f"v_mov_b32 v{vLA[2+b]}, v{vLA[4+b]}", f"v_mov_b32 v{vLA[4+b]}, v{vTMP}"]
        rot += ["s_branch L_loop"]
        pre = ["p0", "p1", "b0", "body", "body", "body"]
        paths = [pre + ["disp", "tail"], pre + ["disp", "tailL"], pre + ["disp", "epi"]]
        B = insert_waits(B, paths)
        B, nn = fix_hazards(B, paths)
        T = {b: [c.txt for c in B[b]] for b in B}
        if g.diag:
            T["p0"].insert(2, f"s_memtime s[{SD}:{SD+1}]"); T["p0"].insert(3, "s_memrealtime s[76:77]")
            T["p1"].insert(T["p1"].index("s_barrier") + 1, f"s_memtime s[{SD+2}:{SD+3}]")
            T["p1"].append(f"s_memtime s[{SD+4}:{SD+5}]")
            for b, marks in (("b0", g.diag[0]), ("body", g.diag[1]), ("tail", g.diag[2])):
                nb = []; m = 0; k = 3
                for t in T[b]:
                    if t.startswith("v_mfma"):
                        if m in marks: nb.append(f"s_memtime s[{SD+2*k}:{SD+1+2*k}]"); k += 1
                        m += 1
                    if t == cmp_.txt and b == "body": nb += g.stamp_out(k)
                    nb.append(t)
                if b == "tail": nb.append(f"s_add_u32 s{sN}, s{sN}, 1")
                if b != "body": nb += g.stamp_out(k)
                assert k < 14
                T[b] = nb
        o = [f".globl {KN}", ".p2align 8", f".type {KN},@function", f"{KN}:"]
        for b in ["p0", "p1", "b0", "body", "disp", "tail"]: o += T[b]
        o += ["s_endpgm"] + T["tailL"] + ["s_endpgm"] + rot + T["epi"]
        o += ["L_end:", "s_endpgm"]
        return o

def build3(path, **kw):
    g = Gen3(**kw)
    hdr = open("standalone__swin_window_attn__vision.s.ref").read().split("\n")[:7]
    o = hdr + [f"; @launch kernel={PN} grid=(144,1,1) block=(64,1,1) lds=0",
               f"; @launch kernel={KN} grid=(256,1,1) block=(256,1,1) lds=163840",
               '.amdgcn_target "amdgcn-amd-amdhsa--gfx950"', ".text"]
    pk = prep_kernel2()
    if g.warmp:
        i0 = pk.index("s_cbranch_scc1 LP_end") + 1
        pk[i0:i0] = ["s_getpc_b64 s[34:35]", "LP_pc:", f"s_sub_u32 s34, s34, LP_pc-{KN}", "s_subb_u32 s35, s35, 0",
                     "s_lshr_b32 s36, s2, 3", "s_lshl_b32 s36, s36, 12", "v_lshlrev_b32 v120, 6, v0", "v_add_u32 v120, s36, v120",
                     f"v_min_u32 v120, L_end-{KN}, v120", "global_load_dword v121, v120, s[34:35]"]
    o += g.main_kernel() + pk
    o += ['.section .rodata,"a"'] + kd(KN, 512, 256, 100) + kd(PN, 136, 136, 40)
    open(path, "w").write("\n".join(o) + "\n")

if __name__ == "__main__":
    kw = eval("dict(" + (sys.argv[2] if len(sys.argv) > 2 else "") + ")")
    build3(sys.argv[1], **kw)
```

```python
import re

def regs(f, i, n=1):
    return [f"{f}{k}" for k in range(i, i+n)]
def rt(f, i, n=1):
    return f"{f}{i}" if n == 1 else f"{f}[{i}:{i+n-1}]"

COST = dict(M=1, V=1, T=2, X=2, DR=1, DW=5, GL=1, GD=1, GS=1, S=1, F=1, B=1, DW2=2)
VALU = ("V", "T", "X")

class I:
    def __init__(s, txt, k, rd=(), wr=(), c=(), dl=None, vm=None, lg=None, wide=False):
        s.txt = txt; s.k = k; s.rd = set(rd); s.wr = set(wr); s.c = set(c)
        s.rd |= s.c
        s.dl = dl; s.vm = vm; s.lg = lg; s.wide = wide; s.nb = None; s.nt = None
    def __repr__(s): return s.txt

def is_sreg(r): return r[0] == "s" or r in ("vcc", "m0")

def edge_ws(p, c):
    raw = p.wr & c.rd; war = p.rd & c.wr; waw = p.wr & c.wr
    if not (raw or war or waw): return None
    ws = 0
    if p.k == "M":
        if c.k == "M":
            if raw - c.c: ws = max(ws, 8)
            elif raw and p.wr != c.c: ws = max(ws, 6)
        else:
            if raw or waw: ws = max(ws, 8)
            if (p.c & c.wr) and c.k in VALU: ws = max(ws, 3)
    if p.k in VALU:
        vraw = {r for r in raw if r[0] in "va" and r != "vcc"}
        sraw = {r for r in raw if is_sreg(r)}
        if vraw:
            if c.k == "M": ws = max(ws, 2)
            if c.k == "X": ws = max(ws, 2)
            if p.k == "T" and c.k in ("V", "X"): ws = max(ws, 1)
            if "readfirstlane" in c.txt or "readlane" in c.txt: ws = max(ws, 1)
        if sraw:
            if c.k in VALU: ws = max(ws, 2)
            elif c.k in ("GL", "GD", "GS"): ws = max(ws, 5)
            else: ws = max(ws, 4)
    if p.k == "GS" and p.wide and war: ws = max(ws, 2)
    if p.k == "S" and "m0" in raw and c.k == "GD": ws = max(ws, 1)
    return ws

def edge_lat(p, c, lds_lat):
    raw = p.wr & c.rd
    real = {r for r in raw if r[0] in "vas"}
    if p.k == "M" and c.k != "M" and (raw or (p.wr & c.wr)): return 7
    if p.k == "DR" and real: return lds_lat
    if p.k == "GL" and real: return 200
    if p.k in ("DW", "DW2") and c.k == "B" and raw: return 18
    return COST[p.k]

def schedule(seq, lds_lat=36, end_slack=None, verbose=False, name=""):
    n = len(seq)
    preds = [[] for _ in range(n)]; succs = [[] for _ in range(n)]
    lastw = {}; readers = {}
    for i, c in enumerate(seq):
        ps = set()
        for r in c.rd:
            if r in lastw: ps.add(lastw[r])
        for r in c.wr:
            if r in lastw: ps.add(lastw[r])
            ps.update(readers.get(r, ()))
        ps.discard(i)
        for j in ps:
            w = edge_ws(seq[j], c); l = edge_lat(seq[j], c, lds_lat)
            preds[i].append((j, w or 0, l)); succs[j].append((i, w or 0, l))
        for r in c.rd: readers.setdefault(r, []).append(i)
        for r in c.wr: lastw[r] = i; readers[r] = []
    midx = [i for i in range(n) if seq[i].k == "M"]
    mpos = {i: k for k, i in enumerate(midx)}
    END = 4*len(midx) + 8
    LS = [0]*n
    for i in range(n-1, -1, -1):
        c = seq[i]
        if c.k == "M": LS[i] = 4*mpos[i]; continue
        v = END + (c.dl if c.dl is not None else 0) if (c.dl is not None or not succs[i]) else 10**9
        for (j, w, l) in succs[i]:
            v = min(v, LS[j] - max(l, (w*4+2)//3))
        LS[i] = v
    done_t = [None]*n; done_n = [None]*n
    out = []; t = 0; last_m = -100; nm = 0
    remaining = set(i for i in range(n) if seq[i].k != "M")
    npend = [len(preds[i]) for i in range(n)]
    avail = set(i for i in remaining if npend[i] == 0)
    gap_valu = False; gap_n = 0
    stalls = 0
    VM = ("GL", "GD", "GS")
    def ready(i, tt, cnt):
        for (j, w, l) in preds[i]:
            if done_t[j] is None: return False
            if tt < done_t[j] + l: return False
            if cnt - done_n[j] - 1 < w: return False
        return True
    def ws_only(i, tt):
        blk = False
        for (j, w, l) in preds[i]:
            if done_t[j] is None or tt + 2 < done_t[j] + l: return False
            if len(out) - done_n[j] - 1 < w: blk = True
        return blk
    def emit(i):
        nonlocal t
        done_t[i] = t; done_n[i] = len(out); out.append(seq[i])
        for (j, w, l) in succs[i]:
            npend[j] -= 1
            if npend[j] == 0 and seq[j].k != "M": avail.add(j)
    def nb_ok(c): return not (c.nb is not None and nm <= c.nb and mi is not None) and not (c.nt is not None and t < c.nt)
    while nm < len(midx) or remaining:
        mi = midx[nm] if nm < len(midx) else None
        if mi is not None and t >= last_m + 4 and ready(mi, t, len(out)):
            if nm > 0 and t > last_m + 4: stalls += t - last_m - 4
            emit(mi); last_m = t; nm += 1; t += 1; gap_valu = False; gap_n = 0
            continue
        scalar_only = (t == last_m + 1)
        m_ok_soon = mi is not None and all(done_t[j] is not None for (j, w, l) in preds[mi])
        room = (last_m + 4 - t) if (mi is not None and m_ok_soon) else 99
        if scalar_only and gap_n == 0:
            vm = [i for i in avail if seq[i].k in VM and nb_ok(seq[i]) and ready(i, t+1, len(out))]
            urg = [i for i in avail if seq[i].k not in VM and seq[i].k not in ("S", "B") and LS[i] <= t + 4 and nb_ok(seq[i])]
            if vm and len(urg) < 2:
                i = min(vm, key=lambda i: (LS[i], i))
                t += 1; avail.discard(i); remaining.discard(i); emit(i); gap_n += 1; t += 1
                if seq[i].k == "GS": last_m += 1; t += 1; stalls += 1
                continue
        best = None
        for i in avail:
            c = seq[i]
            if scalar_only and c.k not in ("S", "B"): continue
            if not nb_ok(c): continue
            if not ready(i, t, len(out)): continue
            cost = COST[c.k]
            urgent = LS[i] <= t + 2
            if room > 0 and room < 99 and cost > room and not urgent and c.k != "DW": continue
            if c.k == "DW" and room < 99 and room != 2 and room > 0 and not urgent: continue
            if c.k in VM and 0 < room < 99 and not urgent: continue
            if gap_valu and c.k in ("DR", "DW", "DW2", "GL", "GS", "GD") and room < 99 and not urgent: continue
            key = (LS[i] - (3 if (c.k in ("DR",) and not gap_valu) else 0), i)
            if best is None or key < best[0]: best = (key, i)
        if best is not None:
            i = best[1]; avail.discard(i); remaining.discard(i)
            emit(i); gap_n += 1
            if seq[i].k in VALU: gap_valu = True
            t += COST[seq[i].k]
            continue
        cand = ([mi] if mi is not None else []) + [i for i in avail if nb_ok(seq[i])]
        if any(ws_only(i, t) for i in cand):
            out.append(I("s_nop 0", "S")); gap_n += 1
        t += 1
    if verbose:
        print(f"; sched {name}: {len(midx)} mfma, {n} instrs, est slots {t} ({4*t} cyc), mfma-bound {16*len(midx)}, stall slots {stalls}")
    return out, t

def insert_waits(blocks, path, hoist=True):
    waits = {}
    paths = path if isinstance(path[0], list) else [path]
    path = []
    for p_ in paths: path += ["#"] + p_
    changed = True
    while changed:
        changed = False
        for b in path:
            if b == "#":
                cnt = dict(vm=0, lg=0); done = dict(vm=0, lg=0); pend = {}
                continue
            L = blocks[b]
            hist = []
            lastM = None
            for pos, c in enumerate(L):
                hist.append(dict(cnt))
                w = waits.get((b, pos))
                if w:
                    if w[0] is not None: done["vm"] = max(done["vm"], cnt["vm"] - w[0])
                    if w[1] is not None: done["lg"] = max(done["lg"], cnt["lg"] - w[1])
                if c.k == "F":
                    if c.vm is not None: done["vm"] = max(done["vm"], cnt["vm"] - c.vm)
                    if c.lg is not None: done["lg"] = max(done["lg"], cnt["lg"] - c.lg)
                    lastM = None
                need = dict(vm=0, lg=0)
                for r in (c.rd | c.wr):
                    if r in pend:
                        cls, k = pend[r]
                        if r not in c.rd and ((cls == "vm" and c.k == "GL") or (cls == "lg" and c.k == "DR")): continue
                        if k > done[cls]: need[cls] = max(need[cls], k)
                for ci, cls in enumerate(("vm", "lg")):
                    k = need[cls]
                    if k:
                        p = pos
                        if hoist and lastM is not None:
                            q_ = lastM + 1
                            if q_ < pos and L[q_].k in ("GL", "GD", "GS"): q_ += 1
                            if hist[q_][cls] >= k: p = q_
                        N = min(hist[p][cls] - k, 63 if cls == "vm" else 15)
                        w = waits.setdefault((b, p), [None, None])
                        if w[ci] is None or N < w[ci]: w[ci] = N; changed = True
                        done[cls] = max(done[cls], hist[p][cls] - N)
                for r in c.wr: pend.pop(r, None)
                if c.k in ("GL", "GD", "GS"):
                    cnt["vm"] += 1
                    if c.k in ("GL", "GD"):
                        for r in c.wr:
                            if r != "ord": pend[r] = ("vm", cnt["vm"])
                elif c.k in ("DR", "DW", "DW2"):
                    cnt["lg"] += 1
                    if c.k == "DR":
                        for r in c.wr:
                            if r[0] in "va": pend[r] = ("lg", cnt["lg"])
                    else:
                        for r in c.wr:
                            if r[0] == "P": pend[r] = ("lg", cnt["lg"])
                if c.k == "M": lastM = pos
    out = {}
    for b, L in blocks.items():
        o = []
        for pos, c in enumerate(L):
            w = waits.get((b, pos))
            if w:
                s = "s_waitcnt" + (f" vmcnt({w[0]})" if w[0] is not None else "") + (f" lgkmcnt({w[1]})" if w[1] is not None else "")
                o.append(I(s, "S"))
            o.append(c)
        out[b] = o
    return out

def fix_hazards(blocks, path):
    nops = {}
    paths = path if isinstance(path[0], list) else [path]
    path = []
    for p_ in paths: path += ["#"] + p_
    changed = True
    while changed:
        changed = False
        for b in path:
            if b == "#":
                lin = []
                continue
            for pos, c in enumerate(blocks[b]):
                k = nops.get((b, pos), 0)
                if k: lin.append((None, k))
                if c.txt.endswith(":") or c.txt.startswith("."):
                    continue
                dist = 0; need = 0
                for (p, st) in reversed(lin[-14:]):
                    if p is not None:
                        w = edge_ws(p, c)
                        if w and w > dist: need = max(need, w - dist)
                    dist += st
                    if dist >= 10: break
                if need:
                    nops[(b, pos)] = k + need; changed = True
                    lin.append((None, need))
                m = re.match(r"s_nop (\d+)", c.txt)
                lin.append((c, int(m.group(1)) + 1 if m else 1))
    out = {}; tot = 0
    for b, L in blocks.items():
        o = []
        for pos, c in enumerate(L):
            k = nops.get((b, pos), 0)
            if k: o.append(I(f"s_nop {k-1}", "S")); tot += 1
            o.append(c)
        out[b] = o
    return out, tot
```

```python
import sys, re
from align import sizes, isins, KN
def pads(text, nw=3, order=None, PG=4096, lab=(), fine=None, quiet=False, off=0, entry=1, tch=(), tfl='', tmask=None):
    L = text.split("\n")
    end = L.index('.section .rodata,"a"')
    a = L.index(KN + ":"); b = L.index("L_end:")
    idx = [i for i in range(end) if isins(L[i])]
    sz = sizes(L[:end]); assert len(sz) == len(idx)
    S = dict(zip(idx, sz))
    fine = fine or {}
    out = []; addr = 0; blk = "p0"; b0 = 0; P = []
    nxt = PG + off; prevm = False; fn = None; masked = False
    def pad():
        nonlocal addr
        P.append((len(P), blk, addr)); out.append(f"@PAD{len(P)-1}"); addr += 4
    def setf():
        nonlocal fn
        fn = (addr//64*64 + fine[blk][0]) if blk in fine else None
    setf()
    for i in range(a+1, b):
        t = L[i]
        if not isins(t):
            m = re.match(r"\.p2align (\d+)", t)
            if m: al = 1 << int(m.group(1)); addr = (addr + al - 1)//al*al
            out.append(t)
            if t.endswith(":"):
                blk = t[:-1]; b0 = addr
                if blk in lab: pad()
                setf()
            continue
        hz = L[i-1].startswith(("s_add_u32 m0", "s_nop", "v_cmp", "s_cmp", "s_bitcmp", "s_getpc")) or t.startswith("s_nop")
        if masked: pass
        elif addr >= nxt and (prevm or addr >= nxt + 40 - 0) and not (hz and addr < nxt + 56):
            pad(); nxt = (nxt//PG + 1)*PG + off
        elif fn is not None and addr >= fn and addr - b0 < fine[blk][1]:
            pad(); fn = addr//64*64 + fine[blk][0]
        out.append(t); addr += S[i]; prevm = t.startswith(("v_mfma", "v_smfmac"))
        if re.search(r"^s_\w+ exec", t) or "saveexec" in t or t.startswith("v_cmpx"): masked = t != "s_mov_b64 exec, -1"
        if entry and i == a + 2: pad()
    key = lambda p: ((order.index(p[1]) if p[1] in order else 99), p[0])
    Q = [p[0] for p in sorted(P, key=key)]
    own = {}
    for n in range(nw):
        ch = Q[n::nw]
        for k, p in enumerate(ch): own[p] = (n, k == 0, f"LW_p{ch[k+1]}" if k + 1 < len(ch) else ("LP_tch" if tch else "LP_end"))
    res = []
    for t in out:
        if t.startswith("@PAD"):
            p = int(t[4:]); n, first, nx = own[p]
            if first: res.append(f"LW_first{n}:")
            res.append(f"LW_p{p}:"); res.append(f"s_cbranch_execz {nx}")
        else: res.append(t)
    if not quiet: print("; pads", len(P), [(bl, hex(ad), own[p][0]) for p, bl, ad in P])
    H = L[:a+1]
    k = max(i for i, t in enumerate(H) if t == ".p2align 8"); H[k] = ".p2align 12"
    H = [t.replace("block=(64,1,1)", f"block=({64*(nw+1)},1,1)") if "kernel=swin_prep_kernel" in t else t for t in H]
    T = L[b:]
    k0 = T.index("swin_prep_kernel:"); k1 = T.index("LP_end:")
    W = ["LP_walk:"]; ROW = 196224
    if tch:
        assert nw == 4
        W += ["s_load_dwordx2 s[20:21], s[0:1], 0", "v_and_b32 v0, 63, v0", "v_mul_u32_u24 v1, 37, v0", "v_lshrrev_b32 v1, 8, v1", f"v_mul_u32_u24 v1, {ROW - 7*384}, v1",
              "v_mul_u32_u24 v2, 384, v0", "v_add_u32 v1, v1, v2", "v_cmp_gt_u32 vcc, 49, v0", "v_mov_b32 v2, 0x80000000", "s_mov_b32 s22, 100270464", "s_mov_b32 s23, 0x20000"]
        if tmask: W += [f"s_mov_b32 vcc_lo, {tmask & 0xffffffff:#x}", f"s_mov_b32 vcc_hi, {tmask >> 32:#x}"]
        W += ["v_cndmask_b32 v1, v2, v1, vcc", "s_lshr_b32 s39, s38, 6", "s_lshl_b32 s36, s2, 2", "s_add_u32 s39, s39, s36"]
    W += ["s_mov_b64 exec, 0"]
    for n in range(nw - 1): W += [f"s_cmp_eq_u32 s38, {64*(n+1)}", f"s_cbranch_scc1 LW_first{n}"]
    W += [f"s_branch LW_first{nw-1}"]
    if tch:
        W += ["LP_tch:", "s_mov_b64 exec, -1", "s_cmp_ge_u32 s2, 256", "s_cbranch_scc1 LP_end", "s_waitcnt lgkmcnt(0)"]
        last = None
        for dw, of in tch:
            if dw != last:
                W += [f"s_add_u32 s36, s39, {1024*dw - 1}", "s_mul_hi_u32 s37, s36, 58835169", "s_mul_i32 s38, s37, 73", "s_sub_u32 s38, s36, s38", f"s_mul_i32 s37, s37, {7*ROW}",
                      f"s_mul_i32 s38, s38, {7*384}", "s_add_u32 s37, s37, s38"]
            last = dw
            W += [f"buffer_load_dword v3, v1, s[20:23], s37 offen offset:{128*of} {tfl}".rstrip()]
        W += ["s_endpgm"]
    T = T[:k0+1] + ["v_readfirstlane_b32 s38, v0", "s_cmp_lg_u32 s38, 0", "s_cbranch_scc1 LP_walk"] + T[k0+1:k1] + W + T[k1:]
    return "\n".join(H + res + T)
if __name__ == "__main__":
    t = open(sys.argv[1]).read()
    kw = dict(order=['p0','L_pB','L_co2w','L_b0','L_b0B','L_loop','L_loop1','L_disp','L_rot','L_dispB','L_tailL','L_epiB'], lab=('L_pB','L_co2w','L_disp','L_rot','L_dispB','L_tailL','L_epiB'))
    if len(sys.argv) > 3: kw.update(eval("dict(" + sys.argv[3] + ")"))
    open(sys.argv[2], "w").write(pads(t, **kw))
```
